```python
import torch

def _softmax(x, axis=-1):
    return torch.softmax(x, dim=axis)
def _gelu(x):
    return torch.nn.functional.gelu(x, approximate="tanh")
def _silu(x):
    return torch.nn.functional.silu(x)
def _sigmoid(x):
    return torch.sigmoid(x)
def _layernorm(x, axis=-1, eps=1e-5):
    m = x.mean(dim=axis, keepdim=True)
    v = x.var(dim=axis, keepdim=True, unbiased=False)
    return (x - m) / torch.sqrt(v + eps)
def _scatter_add(tgt, idx, src, axis=0):
    return tgt.clone().index_add_(axis, idx, src)
def _segment_sum(src, seg, n):
    out = torch.zeros((n,) + src.shape[1:], dtype=src.dtype)
    return out.index_add_(0, seg, src)
def _pad(x, pw):
    flat = tuple(v for pair in reversed(pw) for v in pair)
    return torch.nn.functional.pad(x, flat)

kernel_name = 'recurrent_scan__ssm_conv_h3__dense_activation_gelu__prompt'

def setup_inputs():

    _w = (lambda a: (lambda t: t.to(torch.bfloat16) if t.is_floating_point() else t)(torch.as_tensor(a)))
    def _A_setup():
        B, S, D = 1, 2048, 640
        ks = 4
        return {
            "q": _w((lambda *s: torch.randn(*s, dtype=torch.bfloat16) * 0.05)(B, S, D)),
            "k": _w((lambda *s: torch.randn(*s, dtype=torch.bfloat16) * 0.8)(B, S, D)),
            "v": _w((lambda *s: torch.randn(*s, dtype=torch.bfloat16) * 0.8)(B, S, D)),
            "shift_k": _w((lambda *s: torch.randn(*s, dtype=torch.bfloat16) * 0.8)(D, ks) * 0.5),
            "ssm_k": _w((lambda *s: torch.randn(*s, dtype=torch.bfloat16) * 0.8)(D, S) * (1.0 / S ** 0.5)),
            "ssm_D": _w((lambda *s: torch.randn(*s, dtype=torch.bfloat16) * 0.8)(D)),
        }
    _A_in = _A_setup()

    def _B_setup():
        B, S, D, F = 1, 2048, 640, 1728
        return {
            "x": _w((lambda *s: torch.randn(*s, dtype=torch.bfloat16) * 0.05)(B, S, D)),
            "w1": _w((lambda *s: torch.randn(*s, dtype=torch.bfloat16) * 0.2)(D, F) * (D ** -0.5)),
            "b1": _w((lambda *s: torch.randn(*s, dtype=torch.bfloat16) * 0.2)(F) * 0.01),
            "w2": _w((lambda *s: torch.randn(*s, dtype=torch.bfloat16) * 0.2)(F, D) * (F ** -0.5)),
            "b2": _w((lambda *s: torch.randn(*s, dtype=torch.bfloat16) * 0.2)(D) * 0.01),
        }
    _B_in = _B_setup()

    return {
        "A_q": _A_in["q"],
        "A_k": _A_in["k"],
        "A_v": _A_in["v"],
        "A_shift_k": _A_in["shift_k"],
        "A_ssm_k": _A_in["ssm_k"],
        "A_ssm_D": _A_in["ssm_D"],
        "B_x": _B_in["x"],
        "B_w1": _B_in["w1"],
        "B_b1": _B_in["b1"],
        "B_w2": _B_in["w2"],
        "B_b2": _B_in["b2"],
    }

def reference(A_q, A_k, A_v, A_shift_k, A_ssm_k, A_ssm_D, B_x, B_w1, B_b1, B_w2, B_b2):
    def _A_ref(q, k, v, shift_k, ssm_k, ssm_D):
        B, S, D = q.shape
        ks = shift_k.shape[-1]
        k_pad = _pad(k, ((0, 0), (ks - 1, 0), (0, 0)))
        k_shift = torch.zeros_like(k)
        for t in range(ks):
            k_shift = k_shift + k_pad[:, t:t + S, :] * shift_k[:, ks - 1 - t][None, None, :]
        kv = k_shift * v
        L = 2 * S
        kv_pad = _pad(kv, ((0, 0), (0, S), (0, 0)))
        kf_pad = _pad(ssm_k, ((0, 0), (0, S)))
        kv_f = (lambda x, axes=(-2,-1): torch.fft.rfft2(x.float(), dim=axes))(kv_pad[:, None, :, :], axes=(1, 2))
        kf_f = (lambda x, axes=(-2,-1): torch.fft.rfft2(x.float(), dim=axes))(kf_pad[:, None, :], axes=(1, 2))
        kf_f = (lambda x, *d: x.permute(*d))(kf_f, 1, 2, 0)
        y_f = kv_f * kf_f[None, :, :, :]
        y = (lambda x, s, axes=(-2,-1): torch.fft.irfft2(x, s=s, dim=axes).to(torch.bfloat16))(y_f, (1, L), axes=(1, 2))[:, 0, :S, :]
        y = y + kv * ssm_D[None, None, :]
        return q * y

    def _B_ref(x, w1, b1, w2, b2):
        h = torch.einsum("bsd,df->bsf", x, w1) + b1
        h = _gelu(h)
        return torch.einsum("bsf,fd->bsd", h, w2) + b2

    x = A_q
    xn = _layernorm(x, axis=-1)
    s = _A_ref(xn, A_k, A_v, A_shift_k, A_ssm_k, A_ssm_D)
    g = _silu(_B_ref(xn, B_w1, B_b1, B_w2, B_b2))
    return x + s * g
```

```python
class Asm:
    def __init__(self):
        self.lines = []
        self._uid = 0

    def __call__(self, s=""):
        for ln in s.split("\n"):
            self.lines.append("    " + ln.strip() if ln.strip() and not ln.strip().endswith(":") else ln.strip())

    def c(self, s):
        self.lines.append("    ; " + s)

    def label(self, name):
        self.lines.append(name + ":")

    counter = 0

    def uid(self, stem):
        Asm.counter += 1
        return f"{stem}_{Asm.counter}"

    def text(self):
        return "\n".join(self.lines) + "\n"


def vr(base, n=1):
    return f"v{base}" if n == 1 else f"v[{base}:{base + n - 1}]"


def ar(base, n=1):
    return f"a{base}" if n == 1 else f"a[{base}:{base + n - 1}]"


def sr(base, n=1):
    return f"s{base}" if n == 1 else f"s[{base}:{base + n - 1}]"


def srd(a, dst, ptr, size, off=0):
    if off:
        a(f"s_add_u32 s{dst}, s{ptr}, {off}")
        a(f"s_addc_u32 s{dst + 1}, s{ptr + 1}, 0")
    else:
        a(f"s_mov_b32 s{dst}, s{ptr}")
        a(f"s_mov_b32 s{dst + 1}, s{ptr + 1}")
    a(f"s_mov_b32 s{dst + 2}, {size}")
    a(f"s_mov_b32 s{dst + 3}, 0x20000")


class Prof:
    enabled = False
    BASE = 0x2000000
    regs = []
    only = None
    op = "s_memrealtime"

    amp = None

    @classmethod
    def amplify(cls, a, wg, wave):
        name, k, who = cls.amp
        reg = dict(cls.used)
        a(f"s_cmp_lg_u32 {wg}, {who}")
        a("s_cbranch_scc1 AMP_END")
        a(f"s_cmp_lg_u32 {wave}, 0")
        a("s_cbranch_scc1 AMP_END")
        a(f"s_sub_u32 s36, s{reg[name]}, s{reg['start']}")
        a(f"s_mul_i32 s36, s36, {k}")
        if cls.op == "s_memtime":
            a("s_lshr_b32 s36, s36, 4")
            a(f"s_memrealtime s[{reg['end']}:{reg['end'] + 1}]")
            a("s_waitcnt lgkmcnt(0)")
        a.label("AMP_LOOP")
        a("s_memrealtime s[34:35]")
        a("s_waitcnt lgkmcnt(0)")
        a(f"s_sub_u32 s37, s34, s{reg['end']}")
        a("s_cmp_lt_u32 s37, s36")
        a("s_cbranch_scc1 AMP_LOOP")
        a.label("AMP_END")
        return [n for n, _ in cls.used]

    @classmethod
    def reset(cls, regs):
        cls.regs = list(regs)
        cls.used = []

    @classmethod
    def stamp(cls, a, name):
        if not cls.enabled:
            return
        if cls.only is not None and name not in cls.only and name not in ("start", "end"):
            return
        old = [r for n, r in cls.used if n == name]
        if old:
            r = old[0]
        else:
            r = cls.regs[len(cls.used)]
            cls.used.append((name, r))
        a(f"s_getpc_b64 s[{r}:{r + 1}]" if name == "pc" else f"{cls.op} s[{r}:{r + 1}]")

    @classmethod
    def dump(cls, a, kidx, ws_ptr, wg="s2", wave="s3"):
        if not cls.enabled:
            return
        cls.stamp(a, "end")
        a("s_waitcnt lgkmcnt(0)")
        if cls.amp:
            return cls.amplify(a, wg, wave)
        for n, (name, r) in enumerate(cls.used):
            a(f"v_writelane_b32 v250, s{r}, {2 * n}")
            a(f"v_writelane_b32 v250, s{r + 1}, {2 * n + 1}")
        a(f"s_add_u32 s32, s{ws_ptr}, {cls.BASE + kidx * 0x40000}")
        a(f"s_addc_u32 s33, s{ws_ptr + 1}, 0")
        a("s_mov_b32 s34, 0x40000")
        a("s_mov_b32 s35, 0x20000")
        a(f"s_lshl_b32 s36, {wg}, 2")
        a(f"s_add_u32 s36, s36, {wave}")
        a("s_lshl_b32 s36, s36, 7")
        a("s_mov_b64 exec, -1")
        a("v_mbcnt_lo_u32_b32 v251, -1, 0")
        a("v_mbcnt_hi_u32_b32 v251, -1, v251")
        a("v_lshlrev_b32 v251, 2, v251")
        a("s_mov_b32 exec_lo, -1")
        a("s_mov_b32 exec_hi, 0")
        a("buffer_store_dword v250, v251, s[32:35], s36 offen")
        return [n for n, _ in cls.used]
```

```python
S, D, F = 2048, 640, 1728
NB_SD = S * D * 2
NB_W = D * F * 2

WS_STATS = 0x10000
WS_UT = 0x100000
WS_W2F = 0x400000
WS_YT = 0x700000
WS_HF = 0xA00000
NB_STATS = S * 8
NB_UT = NB_SD
NB_W2F = 8 * 54 * 5 * 1024
NB_YT = NB_SD
NB_HF = 128 * 54 * 1024

P_Q, P_K, P_V, P_SH, P_SSM, P_SD, P_BX, P_W1, P_B1, P_W2, P_B2, P_OUT, P_DBG, P_WS = range(4, 32, 2)


def load_ptrs(a):
    a("s_load_dwordx16 s[4:19], s[0:1], 0")
    a("s_load_dwordx8 s[20:27], s[0:1], 64")
    a("s_load_dwordx4 s[28:31], s[0:1], 96")


def entry(a, end_label):
    a("s_cmp_ge_u32 s2, 256")
    a(f"s_cbranch_scc1 {end_label}")
    load_ptrs(a)
    a("v_lshrrev_b32 v1, 6, v0")
    a("v_and_b32 v0, 63, v0")
    a("s_nop 0")
    a("v_readfirstlane_b32 s3, v1")
    a("s_waitcnt lgkmcnt(0)")
```

```python
from fcommon import *

COPY = 4160
UOFF = 4 * COPY
CH_BYTES = 21248
LDS_XCH = 4 * CH_BYTES
LDS_YS = LDS_XCH + 16384

V_F, V_G = 2, 3
FSET = [32, 96]
GSET = [64, 128]
CACC = 160
FD = 192
S_CH, S_CHOFF, S_CB, S_HF, S_UO, S_HO = 84, 85, 86, 87, 88, 89
S_DV = 77


def unit_reads(rs, u):
    out = []
    for n in range(8):
        out.append(f"ds_read_b128 {vr(GSET[rs] + 4 * n, 4)}, v{V_G} offset:{512 * n + 64 * (7 - u)}")
        for q in range(2):
            out.append(f"ds_read_b64 {vr(FSET[rs] + 4 * n + 2 * q, 2)}, v{V_F} offset:{512 * n + 64 * u + 8 * q}")
    return out


def unit_mfmas(rs, first):
    out = []
    if first:
        for p in range(8):
            out.append(f"v_mfma_f32_16x16x32_bf16 {vr(CACC + 4 * p, 4)}, {vr(FD, 4)}, {vr(GSET[rs] + 4 * p, 4)}, 0")
    for n in range(8):
        for p in range(n, 8):
            out.append(f"v_mfma_f32_16x16x32_bf16 {vr(CACC + 4 * p, 4)}, {vr(FSET[rs] + 4 * n, 4)}, {vr(GSET[rs] + 4 * (p - n), 4)}, {vr(CACC + 4 * p, 4)}")
    return out


def channel_scalars(a, chan_expr_done=True):
    a(f"s_lshl_b32 s{S_CHOFF}, s{S_CH}, 12")
    a(f"s_add_u32 s{SRD_B}, s{P_SSM}, s{S_CHOFF}")
    a(f"s_addc_u32 s{SRD_B + 1}, s{P_SSM + 1}, 0")
    a(f"s_mov_b32 s{SRD_B + 2}, 4096")
    a(f"s_mov_b32 s{SRD_B + 3}, 0x20000")


def filter_loads(npl, HA, HC, HE, vaddr, s_hoff, fam="nt_kv"):
    out = []
    for p in range(npl):
        out.append(f"buffer_load_dwordx4 {vr(HA + 4 * p, 4)}, v{vaddr}, {q4(SRD_B)}, {s_hoff} offen offset:{1024 * p}{nt(fam)}")
        out.append(f"buffer_load_dwordx4 {vr(HC + 4 * p, 4)}, v{vaddr}, {q4(SRD_B)}, {s_hoff} offen offset:{1024 * p + 4}{nt(fam)}")
        out.append(f"buffer_load_dwordx4 {vr(HE + 4 * p, 4)}, v{vaddr}, {q4(SRD_B)}, {s_hoff} offen offset:{1024 * p + 8}{nt(fam)}")
    return out


def filter_loads_once(npl, HA, vaddr, s_hoff):
    return [f"buffer_load_dwordx4 {vr(HA + 4 * p, 4)}, v{vaddr}, {q4(SRD_B)}, {s_hoff} offen offset:{1024 * p}{nt('nt_kv')}" for p in range(npl)]


def shift_filter(a, npl, HA, HC, HE, nxt=None):
    dpp = "row_mask:0xf bank_mask:0xf"
    for p in range(npl):
        for d, dst in ((0, HC + 4 * p + 3), (1, HE + p)):
            if p < npl - 1:
                a(f"v_mov_b32_dpp v{dst}, v{HA + 4 * (p + 1) + d} wave_rol:1 {dpp}")
            elif nxt is not None:
                a(f"v_mov_b32_dpp v{dst}, v{nxt + d} wave_rol:1 {dpp}")
    for p in range(npl):
        for i in range(3):
            a(f"v_mov_b32 v{HC + 4 * p + i}, v{HA + 4 * p + i + 1}")
    for p in range(npl):
        for d, dst in ((0, HC + 4 * p + 3), (1, HE + p)):
            a(f"v_mov_b32_dpp v{dst}, v{HA + 4 * p + d} wave_shl:1 {dpp}" + (" bound_ctrl:0" if p == npl - 1 and nxt is None else ""))
    a("s_nop 1")


def u_loads(npl, UR, vaddr, s_uoff):
    return [f"buffer_load_dwordx4 {vr(UR + 4 * p, 4)}, v{vaddr}, {q4(SRD_WS)}, {s_uoff} offen offset:{1024 * p} sc1" for p in range(npl)]


def input_loads(npl, HA, HC, HE, UR, vaddr, s_uoff, s_hoff, fam="nt_kv"):
    return filter_loads(npl, HA, HC, HE, vaddr, s_hoff, fam) + u_loads(npl, UR, vaddr, s_uoff)


def build(a, npl, HA, HC, HE, UR, W, split, parts=("h", "u"), pop=lambda: None, once=False):
    a("v_lshlrev_b32 v1, 4, v0")
    a(f"v_add_u32 v5, s{S_CB}, v1")
    if "h" in parts:
        skip = None
        if split:
            skip = a.uid("CV_NOPRE")
            a(f"s_cmp_lg_u32 s{S_HF}, 0")
            a(f"s_cbranch_scc1 {skip}")
        for i in range(4):
            a(f"v_mov_b32 v{20 + i}, 0")
        a("v_lshrrev_b32 v4, 1, v0")
        a(f"v_mul_u32_u24 v4, {COPY}, v4")
        a("v_and_b32 v6, 1, v0")
        a("v_lshl_add_u32 v4, v6, 4, v4")
        a(f"v_add_u32 v4, s{S_CB}, v4")
        a("s_mov_b32 exec_lo, 0xff")
        a("s_mov_b32 exec_hi, 0")
        a("ds_write_b128 v4, v[20:23]")
        a("s_mov_b32 exec_lo, -1")
        a(f"ds_write_b128 v5, v[20:23] offset:{UOFF}")
        a(f"v_lshlrev_b32 v12, 16, v{HA}")
        a(f"v_alignbit_b32 v13, v{HC}, v{HA}, 16")
        a("s_mov_b32 exec_lo, 1")
        a(f"ds_write_b32 v5, v12 offset:{COPY + 28}")
        a(f"ds_write_b32 v5, v{HA} offset:{2 * COPY + 28}")
        a(f"ds_write_b64 v5, v[12:13] offset:{3 * COPY + 24}")
        a("s_mov_b64 exec, -1")
        if split:
            a.label(skip)
    if split:
        a(f"s_lshl_b32 s78, s{S_HF}, 11")
        a("v_add_u32 v5, s78, v5")
    for p in range(npl):
        o = 32 + 1024 * p
        if "h" in parts:
            for i in range(4):
                he = HE + 4 * p + i if not once else (HC + 4 * p + i + 1 if i < 3 else HE + p)
                a(f"v_alignbit_b32 v{W + 8 * p + i}, v{HC + 4 * p + i}, v{HA + 4 * p + i}, 16")
                a(f"v_alignbit_b32 v{W + 8 * p + 4 + i}, v{he}, v{HC + 4 * p + i}, 16")
            pop()
            a(f"ds_write_b128 v5, {vr(HA + 4 * p, 4)} offset:{o}")
            a(f"ds_write_b128 v5, {vr(W + 8 * p, 4)} offset:{o + COPY}")
            pop()
            a(f"ds_write_b128 v5, {vr(HC + 4 * p, 4)} offset:{o + 2 * COPY}")
            a(f"ds_write_b128 v5, {vr(W + 8 * p + 4, 4)} offset:{o + 3 * COPY}")
        if "u" in parts:
            a(f"ds_write_b128 v5, {vr(UR + 4 * p, 4)} offset:{UOFF + 512 + 1024 * p}")
        pop()


def bases(a, split, pop=lambda: None, parts=("addr", "diag")):
    if "addr" in parts:
        base_addr(a, split, pop)
    if "diag" in parts:
        diag_fragment(a, split, pop)


def base_addr(a, split, pop):
    a("v_and_b32 v6, 15, v0                    ; i / j")
    a("v_lshrrev_b32 v7, 4, v0                 ; kq / g")
    a("v_add_u32 v8, 1, v6")
    a("v_and_b32 v9, 3, v8                     ; copy")
    a("v_and_b32 v8, 28, v8")
    a(f"v_mul_u32_u24 v9, {COPY}, v9")
    a("v_lshl_add_u32 v9, v8, 1, v9")
    a("v_lshl_add_u32 v9, v7, 4, v9")
    a(f"v_add_u32 v{V_F}, s{S_CB}, v9")
    a("v_lshlrev_b32 v8, 1, v6")
    a("v_sub_u32 v8, v8, v7")
    a("v_lshlrev_b32 v8, 4, v8")
    a(f"v_add_u32 v8, {UOFF + 512 + 16 - 448}, v8")
    a(f"v_add_u32 v{V_G}, s{S_CB}, v8")
    if split:
        a(f"s_lshl_b32 s78, s{S_HF}, 8")
        a(f"v_add_u32 v{V_F}, s78, v{V_F}")
        a(f"v_subrev_u32 v{V_G}, s78, v{V_G}")
    pop()


def diag_fragment(a, split, pop):
    a("v_sub_u32 v8, 15, v6")
    a("v_lshrrev_b32 v9, 3, v8")
    a("v_cmp_eq_u32 s[80:81], v9, v7")
    a("v_bfe_u32 v9, v8, 1, 2")
    a("v_and_b32 v10, 1, v8")
    a("v_lshlrev_b32 v10, 4, v10               ; shift 0 / 16")
    a(f"s_and_b32 s78, s{S_CH}, 1")
    a("s_lshl_b32 s78, s78, 4")
    a(f"s_lshr_b32 s{S_DV}, s{S_DV}, s78")
    a(f"s_and_b32 s{S_DV}, s{S_DV}, 0xffff")
    if split:
        a(f"s_cmp_eq_u32 s{S_HF}, 0")
        a(f"s_cselect_b32 s{S_DV}, s{S_DV}, 0")
    pop()
    a(f"v_mov_b32 v11, s{S_DV}")
    a("v_lshlrev_b32 v11, v10, v11")
    a("v_cndmask_b32 v11, 0, v11, s[80:81]")
    for dw in range(4):
        a(f"v_cmp_eq_u32 vcc, {dw}, v9")
        a("s_nop 1")
        a(f"v_cndmask_b32 v{FD + dw}, 0, v11, vcc")
        if dw & 1:
            pop()


def load_d(a):
    a(f"s_lshl_b32 s78, s{S_CH}, 1")
    a("s_and_b32 s78, s78, -4")
    a(f"s_load_dword s{S_DV}, s[{P_SD}:{P_SD + 1}], s78")


def units(a, vm, n, fill, shadow=None):
    for x in unit_reads(0, 0):
        a(x)
    if shadow:
        shadow(a)
        a("s_nop 1")
    early = "cu0w" not in OPT
    for u in range(n):
        a("s_waitcnt lgkmcnt(15)" if u == 0 and early else "s_waitcnt lgkmcnt(0)")
        Prof.stamp(a, f"cu{u}w" if n == 4 else f"c8u{u}w")
        pre, extra, pinned = fill(u)
        if pre:
            pre(a)
        Prof.stamp(a, f"cu{u}" if n == 4 else f"c8u{u}")
        nxt = unit_reads((u + 1) & 1, u + 1) if u < n - 1 else []
        ms = unit_mfmas(u & 1, u == 0)
        gaps = [[] for _ in ms]
        k0 = len(nxt)
        if "xold" in OPT:
            room = len(ms) - k0 if len(ms) - k0 >= 4 else len(ms)
            for k, x in enumerate(extra):
                gaps[(k0 if room < len(ms) else 0) + (k * room) // max(len(extra), 1)].append(x)
        else:
            nv = sum(1 for x in extra if x[2])
            pos, k, pend = -1, 0, []
            for x in extra:
                if not x[2]:
                    pend.append(x)
                    continue
                p = ((2 * k + 1) * len(ms)) // (2 * nv)
                first = max(0, p - len(pend))
                for j, y in enumerate(pend):
                    gaps[min(first + j, p)].append(y)
                pend = []
                gaps[p].append(x)
                k += 1
            assert not pend
        for i, m in enumerate(ms):
            if u == 0 and early and 3 <= i <= 8:
                done = 3 * i + 1 if i < 8 else 24
                a(f"s_waitcnt lgkmcnt({min(24 + min(i, len(nxt)) - done, 15)})")
            a(m)
            if i < len(nxt):
                a(nxt[i])
            for g, tag, cnt in gaps[i]:
                emit(a, g)
                vm.add(tag, cnt)
            if i in pinned:
                pinned[i](a)


def store_y(a, vm, plist, goff_sgpr, stores=True):
    a("v_bfe_u32 v8, v0, 4, 1")
    a("v_lshlrev_b32 v8, 9, v8")
    a("v_and_b32 v9, 15, v0")
    a("v_lshl_add_u32 v8, v9, 5, v8")
    a("v_lshrrev_b32 v9, 5, v0")
    a("v_lshl_add_u32 v8, v9, 4, v8")
    npc = len(plist) // 2
    for k in range(npc):
        for n in range(2):
            p = plist[2 * k + n]
            a(f"v_cvt_pk_bf16_f32 v{32 + 4 * k + 2 * n}, v{CACC + 4 * p}, v{CACC + 4 * p + 1}")
            a(f"v_cvt_pk_bf16_f32 v{33 + 4 * k + 2 * n}, v{CACC + 4 * p + 2}, v{CACC + 4 * p + 3}")
    a("s_nop 1")
    for k in range(npc):
        a(f"v_permlane16_swap_b32 v{32 + 4 * k}, v{34 + 4 * k}")
        a(f"v_permlane16_swap_b32 v{33 + 4 * k}, v{35 + 4 * k}")
    if stores:
        y_stores(a, vm, npc, goff_sgpr)


def y_stores(a, vm, npc, goff_sgpr):
    for k in range(npc):
        a(f"buffer_store_dwordx4 {vr(32 + 4 * k, 4)}, v8, {q4(SRD_WS)}, {goff_sgpr} offen offset:{1024 * k} sc1")
    vm.add("yt", npc)


C4_HA, C4_HC, C4_HE, C4_UR = 96, 104, 112, 120


def conv4_scalars(a):
    a("s_lshr_b32 s78, s3, 1")
    a(f"s_add_u32 s{S_CH}, s{S_CH}, s78")
    a(f"s_and_b32 s{S_HF}, s3, 1")
    a(f"s_mul_i32 s{S_CB}, s78, {CH_BYTES}")
    channel_scalars(a)
    a(f"s_lshl_b32 s{S_HO}, s{S_HF}, 11")
    a(f"s_add_u32 s{S_UO}, s{S_CHOFF}, s{S_HO}")
    a(f"s_add_u32 s{S_UO}, s{S_UO}, {WS_UT}")


C4_NX = 116


def conv4_loads(vaddr, delta=0, fam="nt_kv"):
    if "c4twice" not in OPT:
        return (filter_loads_once(2, C4_HA + delta, vaddr, f"s{S_HO}") +
                [f"buffer_load_dwordx2 {vr(C4_NX + delta, 2)}, v{vaddr}, {q4(SRD_B)}, s{S_HO} offen offset:2048{nt('nt_kv')}"] +
                u_loads(2, C4_UR + delta, vaddr, f"s{S_UO}"))
    return input_loads(2, C4_HA + delta, C4_HC + delta, C4_HE + delta, C4_UR + delta, vaddr, f"s{S_UO}", f"s{S_HO}", fam)


def gen_conv4(a, vm, fill, before_xbar=None, after_xbar=None, setup_fill=(), at_barrier=None):
    todo = list(setup_fill)

    sites = [11 if "diaglate" not in OPT else 8]

    def pop():
        n = -(-len(todo) // sites[0]) if "xold" not in OPT else min(len(todo), 1)
        sites[0] -= 1
        for _ in range(n):
            g, tag, cnt = todo.pop(0)
            emit(a, g)
            vm.add(tag, cnt)

    vm.wait(a, "c4in", " lgkmcnt(0)")
    Prof.stamp(a, "c4w")
    once = "c4twice" not in OPT
    if "noh4" in OPT:
        build(a, 2, C4_HA, C4_HC, C4_HE, C4_UR, 32, True, parts=("u",), pop=pop, once=once)
    else:
        if once:
            shift_filter(a, 2, C4_HA, C4_HC, C4_HE, C4_NX)
        build(a, 2, C4_HA, C4_HC, C4_HE, C4_UR, 32, True, pop=pop, once=once)
    Prof.stamp(a, "c4b")
    late_diag = "diaglate" in OPT
    bases(a, True, pop=pop, parts=("addr",) if late_diag else ("addr", "diag"))
    Prof.stamp(a, "c4s")
    while todo:
        pop()
    if at_barrier:
        at_barrier(a, False)
    else:
        a("s_waitcnt lgkmcnt(0)")
    a("s_barrier")
    if at_barrier:
        at_barrier(a, True)
    Prof.stamp(a, "cv_built")
    units(a, vm, 4, fill, (lambda r: diag_fragment(r, True, lambda: None)) if late_diag else None)
    Prof.stamp(a, "cv_main")
    if "xold2" in OPT:
        a("s_nop 7")
        a("v_lshlrev_b32 v9, 4, v0")
        a("s_lshl_b32 s78, s3, 12")
        a(f"s_add_u32 s78, s78, {LDS_XCH}")
        a("v_add_u32 v10, s78, v9")
        a("s_xor_b32 s78, s3, 1")
        a("s_lshl_b32 s78, s78, 12")
        a(f"s_add_u32 s78, s78, {LDS_XCH}")
        a("v_add_u32 v11, s78, v9")
        h1, jn = a.uid("CV_H1"), a.uid("CV_XJ")
        a(f"s_cmp_lg_u32 s{S_HF}, 0")
        a(f"s_cbranch_scc1 {h1}")
        for k in range(4):
            a(f"ds_write_b128 v10, {vr(CACC + 16 + 4 * k, 4)} offset:{1024 * k}")
        a(f"s_branch {jn}")
        a.label(h1)
        for k in range(4):
            a(f"ds_write_b128 v10, {vr(CACC + 4 * k, 4)} offset:{1024 * k}")
        for i in range(16):
            a(f"v_mov_b32 v{CACC + i}, v{CACC + 16 + i}")
        a.label(jn)
        for g, tag, cnt in (before_xbar() if before_xbar else []):
            emit(a, g)
            vm.add(tag, cnt)
    else:
        a("s_nop 3")
        pieces = before_xbar() if before_xbar else []
        r = Asm()
        r("v_lshlrev_b32 v9, 4, v0")
        r("s_lshl_b32 s78, s3, 12")
        r(f"s_add_u32 s78, s78, {LDS_XCH}")
        r("v_add_u32 v10, s78, v9")
        r("s_xor_b32 s78, s3, 1")
        r("s_lshl_b32 s78, s78, 12")
        r(f"s_add_u32 s78, s78, {LDS_XCH}")
        r("v_add_u32 v11, s78, v9")
        r(f"s_cmp_lg_u32 s{S_HF}, 0")
        r("s_cselect_b32 s78, -1, 0")
        for k in range(4):
            r("s_mov_b32 exec_lo, s78")
            r("s_mov_b32 exec_hi, s78")
            for i in range(4):
                r(f"v_swap_b32 v{CACC + 4 * k + i}, v{CACC + 16 + 4 * k + i}")
            r("s_mov_b64 exec, -1")
            r(f"ds_write_b128 v10, {vr(CACC + 16 + 4 * k, 4)} offset:{1024 * k}")
        interleave(a, vm, pieces, r.lines)
    a("s_waitcnt lgkmcnt(0)")
    a("s_barrier")
    r = Asm()
    for k in range(4):
        r(f"ds_read_b128 {vr(32 + 4 * k, 4)}, v11 offset:{1024 * k}")
    r("s_waitcnt lgkmcnt(0)")
    for i in range(8):
        r(f"v_pk_add_f32 {vr(CACC + 2 * i, 2)}, {vr(CACC + 2 * i, 2)}, {vr(32 + 2 * i, 2)}")
    r(f"s_lshl_b32 s79, s{S_HF}, 11")
    r(f"s_add_u32 s79, s79, s{S_CHOFF}")
    r(f"s_add_u32 s79, s79, {WS_YT}")
    store_y(r, vm, [0, 1, 2, 3], "s79", stores=False)
    interleave(a, vm, after_xbar() if after_xbar else [], r.lines)
    y_stores(a, vm, 2, "s79")


C8_HA, C8_HC, C8_HE, C8_UR = 32, 48, 64, 80


def conv8_prepare(a):
    a(f"s_add_u32 s{S_CH}, s{S_CH}, s3")
    a(f"s_mul_i32 s{S_CB}, s3, {CH_BYTES}")
    channel_scalars(a)
    a(f"s_add_u32 s{S_UO}, s{S_CHOFF}, {WS_UT}")
    a("v_lshlrev_b32 v1, 4, v0")
    ld = filter_loads_once(4, C8_HA, 1, "0") if "if3" not in OPT else filter_loads(4, C8_HA, C8_HC, C8_HE, 1, "0")
    for x in ld:
        a(x)
    return len(ld)


def conv8_filter_build(a):
    once = "if3" not in OPT
    if once:
        shift_filter(a, 4, C8_HA, C8_HC, C8_HE)
    build(a, 4, C8_HA, C8_HC, C8_HE, C8_UR, 96, False, parts=("h",), once=once)


def gen_conv8(a, vm, fill, after_bases, before_units, s_yoff):
    a("v_lshlrev_b32 v1, 4, v0")
    for x in u_loads(4, C8_UR, 1, f"s{S_UO}"):
        a(x)
    vm.add("u8", 4)
    a("s_waitcnt lgkmcnt(0)")
    bases(a, False)
    after_bases(a)
    vm.wait(a, "u8")
    build(a, 4, C8_HA, C8_HC, C8_HE, C8_UR, 96, False, parts=("u",))
    before_units(a)
    a("s_waitcnt lgkmcnt(0)")
    Prof.stamp(a, "c8_built")
    units(a, vm, 8, fill)
    Prof.stamp(a, "c8_main")
    a("s_nop 7")
    store_y(a, vm, list(range(8)), s_yoff)
```

```python
from fcommon import *

S_X, S_W, S_LB, S_RB, S_CG, S_WF, S_WS, S_ROW0, S_FT0, S_TILE = 60, 61, 62, 63, 64, 65, 66, 67, 68, 69
STAGE, NST, NT = 32768, 4, 10
LOOK = 2
V_DX, V_DW = 240, 244
S_XE, S_WE = 85, 86
B1R = 208


def dma_x(t):
    out = [f"s_add_u32 m0, s{S_LB}, {(t % NST) * STAGE}"]
    for j in range(4):
        out.append(f"buffer_load_dwordx4 v{V_DX + j}, {q4(SRD_Q)}, s{S_X} offen offset:{j * 1024}{nt('nt_x')} lds")
    if t < NT - 1:
        out.append([f"s_add_u32 s{S_X}, s{S_X}, 128", f"s_cmp_eq_u32 s{S_X}, s{S_XE}",
                    "s_cselect_b32 s87, 1280, 0", f"s_sub_u32 s{S_X}, s{S_X}, s87"])
    return out


def dma_w(t):
    out = [f"s_add_u32 m0, s{S_LB}, {(t % NST) * STAGE + 16384}"]
    for j in range(4):
        out.append(f"buffer_load_dwordx4 v{V_DW + j}, {q4(SRD_A)}, s{S_W} offen offset:{j * 1024}{nt('nt_w')} lds")
    if t < NT - 1:
        out.append([f"s_add_u32 s{S_W}, s{S_W}, {64 * 3456}", f"s_cmp_eq_u32 s{S_W}, s{S_WE}",
                    f"s_cselect_b32 s87, {640 * 3456}, 0", f"s_sub_u32 s{S_W}, s{S_W}, s87"])
    return out


def dma_stage_now(a, vm, t):
    for lst in (dma_x(t), dma_w(t)):
        a(lst[0])
        a("s_nop 0")
        for x in lst[1:]:
            emit(a, x)
    vm.add(f"st{t}", 8)


def gen_entry(a, exit_label):
    a("s_cmp_ge_u32 s2, 256")
    a(f"s_cbranch_scc1 {exit_label}")
    load_ptrs(a)
    a("v_lshrrev_b32 v1, 6, v0")
    a(f"s_and_b32 s{S_XCD}, s2, 7")
    a(f"s_lshr_b32 s{S_LOC}, s2, 3")
    if "nocodepf" not in OPT:
        a("s_getpc_b64 s[44:45]")
        a.label("PF_BASE")
        a("s_mov_b32 s46, CODE_END-PF_BASE")
        a("s_mov_b32 s47, 0x20000")
        a(f"s_mul_i32 s78, s{S_LOC}, 9")
        a("v_add_u32 v2, s78, v0")
        a("v_lshlrev_b32 v2, 7, v2")
        a("v_cmp_gt_u32 vcc, 9, v0")
        a("v_cndmask_b32 v2, -1, v2, vcc")
        a("buffer_load_dword v47, v2, s[44:47], 0 offen")
    a("v_and_b32 v0, 63, v0")
    a("v_readfirstlane_b32 s3, v1")


def entry_ptrs(a):
    a("s_waitcnt lgkmcnt(0)")
    a(f"s_load_dword s{S_TAG}, s[{P_WS}:{P_WS + 1}], {WS_EPOCH}")
    srd(a, SRD_Q, P_Q, NB_SD)


def gemm1_setup(a):
    a(f"s_lshr_b32 s73, s{S_XCD}, 1")
    a("s_lshl_b32 s73, s73, 2")
    a(f"s_and_b32 s74, s{S_LOC}, 3")
    a(f"s_add_u32 s{S_RB}, s73, s74")
    a(f"s_and_b32 s73, s{S_XCD}, 1")
    a("s_mul_i32 s73, s73, 7")
    a(f"s_lshr_b32 s74, s{S_LOC}, 2")
    a(f"s_add_u32 s{S_CG}, s73, s74")
    a(f"s_and_b32 s{S_WF}, s3, 1")
    a(f"s_lshr_b32 s{S_WS}, s3, 1")
    a(f"s_mul_i32 s73, s{S_RB}, 163840")
    a("s_mul_i32 s74, s3, 40960")
    a(f"s_add_u32 s{S_X}, s73, s74")
    a(f"s_lshl_b32 s73, s{S_CG}, 8")
    a("s_mul_i32 s74, s3, 55296")
    a(f"s_add_u32 s{S_W}, s73, s74")
    a(f"s_lshl_b32 s{S_LB}, s3, 12")
    a(f"s_add_u32 s{S_XE}, s{S_X}, 1280")
    a(f"s_add_u32 s{S_WE}, s{S_W}, {640 * 3456}")
    a(f"s_lshr_b32 s73, s{S_LOC}, 2")
    a("s_mul_i32 s73, s73, 10")
    a("s_add_u32 s73, s73, 3")
    a("s_mul_i32 s73, s73, 9363")
    a("s_lshr_b32 s73, s73, 16               ; (10 cg + 3) / 7")
    a(f"s_and_b32 s74, s{S_LOC}, 3")
    a("s_mul_i32 s74, s74, 5")
    a("s_lshr_b32 s74, s74, 1")
    a("s_add_u32 s73, s73, s74")
    a("s_cmp_ge_u32 s73, 10")
    a("s_cselect_b32 s74, 10, 0")
    a("s_sub_u32 s73, s73, s74")
    if "norot" in OPT:
        a("s_mov_b32 s73, 0")
    a("s_lshl_b32 s74, s73, 7")
    a(f"s_add_u32 s{S_X}, s{S_X}, s74")
    a(f"s_mul_i32 s74, s73, {64 * 3456}")
    a(f"s_add_u32 s{S_W}, s{S_W}, s74")
    a("v_lshrrev_b32 v1, 3, v0")
    a("v_and_b32 v2, 7, v0")
    a("v_xor_b32 v2, v2, v1")
    a("v_lshlrev_b32 v2, 4, v2")
    a(f"v_mul_u32_u24 v{V_DX}, 1280, v1")
    a(f"v_add_u32 v{V_DX}, v{V_DX}, v2")
    for j in range(1, 4):
        a(f"v_add_u32 v{V_DX + j}, {j * (10240 - 1024)}, v{V_DX}")
    a("v_lshrrev_b32 v1, 4, v0")
    a("v_and_b32 v2, 15, v0")
    a("v_lshlrev_b32 v3, 1, v1")
    a("v_xor_b32 v2, v2, v3")
    a("v_lshlrev_b32 v2, 4, v2")
    a("v_mul_u32_u24 v3, 3456, v1")
    a(f"v_add_u32 v{V_DW}, v3, v2")
    a(f"v_add_u32 v{V_DW + 1}, {4 * 3456 - 1024}, v{V_DW}")
    a("v_xor_b32 v2, 128, v2")
    a("v_add_u32 v3, v3, v2")
    a(f"v_add_u32 v{V_DW + 2}, {2 * (4 * 3456 - 1024)}, v3")
    a(f"v_add_u32 v{V_DW + 3}, {3 * (4 * 3456 - 1024)}, v3")


class KV:
    def __init__(self, raw):
        self.k, self.v, self.sh = raw, raw + 14, raw + 22


def kv_srds(a):
    srd(a, SRD_B, P_K, NB_SD)
    srd(a, SRD_C, P_V, NB_SD)
    srd(a, SRD_D, P_SH, D * 8)


def kv_addr(a, s_rbk, va):
    a(f"v_lshrrev_b32 v{va + 1}, 4, v0")
    a("s_lshl_b32 s78, s3, 2")
    a(f"v_add_u32 v{va + 1}, s78, v{va + 1}          ; rg")
    a(f"v_and_b32 v{va + 4}, 15, v0               ; c4")
    a(f"v_mul_u32_u24 v{va}, 5120, v{va + 1}")
    a(f"v_lshl_add_u32 v{va}, v{va + 4}, 3, v{va}")
    a(f"s_mul_i32 s78, s{s_rbk}, 81920")
    a(f"v_add_u32 v{va}, s78, v{va}")
    a(f"v_add_u32 v{va + 1}, 0xfffff100, v{va}       ; -3840")
    a(f"v_add_u32 v{va + 2}, 0xfffff600, v{va}       ; -2560")
    a(f"v_add_u32 v{va + 3}, 0xfffffb00, v{va}       ; -1280")
    a(f"v_lshlrev_b32 v{va + 4}, 5, v{va + 4}")


def kv_col(a, va, dst, s_col):
    for i in range(4):
        a(f"v_add_u32 v{dst + i}, {s_col}, v{va + i}")


def kv_load_list(R, vrow, vtap, s_tap):
    k, v = q4(SRD_B), q4(SRD_C)
    out = []
    for i in range(3):
        out.append(f"buffer_load_dwordx2 {vr(R.k + 2 * i, 2)}, v{vrow + 1 + i}, {k}, 0 offen{nt('nt_kv')}")
    for r in range(4):
        out.append(f"buffer_load_dwordx2 {vr(R.k + 6 + 2 * r, 2)}, v{vrow}, {k}, 0 offen offset:{r * 1280}{nt('nt_kv')}")
    out.append(f"buffer_load_dwordx4 {vr(R.sh, 4)}, v{vtap}, {q4(SRD_D)}, {s_tap} offen")
    out.append(f"buffer_load_dwordx4 {vr(R.sh + 4, 4)}, v{vtap}, {q4(SRD_D)}, {s_tap} offen offset:16")
    for r in range(4):
        out.append(f"buffer_load_dwordx2 {vr(R.v + 2 * r, 2)}, v{vrow}, {v}, 0 offen offset:{r * 1280}{nt('nt_kv')}")
    return out


def kv_loads(a, R, va, s_col, s_tap):
    kv_col(a, va, va + 8, s_col)
    for x in kv_load_list(R, va + 8, va + 4, s_tap):
        a(x)


NKV = 13


def kv_tile_addr(a, dst, tile):
    a(f"v_and_b32 v{dst}, 15, v0                 ; c4")
    a(f"v_lshrrev_b32 v{dst + 1}, 5, v0")
    a("s_lshl_b32 s78, s3, 1")
    a(f"v_add_u32 v{dst + 1}, s78, v{dst + 1}")
    a(f"v_xor_b32 v{dst + 1}, v{dst + 1}, v{dst}")
    a(f"v_and_b32 v{dst + 1}, 7, v{dst + 1}")
    a(f"v_lshlrev_b32 v{dst + 1}, 4, v{dst + 1}")
    a(f"v_lshl_add_u32 v{dst}, v{dst}, 9, v{dst + 1}")
    a(f"v_bfe_u32 v{dst + 1}, v0, 4, 1")
    a(f"v_xor_b32 v{dst + 1}, 1, v{dst + 1}")
    a(f"v_lshl_add_u32 v{dst}, v{dst + 1}, 3, v{dst}")
    a(f"v_add_u32 v{dst}, {tile}, v{dst}")


def kv_compute(a, R, KL, CF, AC, vaddr, tile_off, wait_k, wait_v):
    a(wait_k)
    for jj in range(2):
        for pi in range(2):
            for h in range(2):
                src = R.sh + 2 * (pi + 2 * h) + jj
                a(f"v_lshlrev_b32 v{CF + (2 * jj) * 4 + 2 * pi + h}, 16, v{src}")
                a(f"v_and_b32 v{CF + (2 * jj + 1) * 4 + 2 * pi + h}, 0xffff0000, v{src}")
    for rho in range(7):
        for h in range(2):
            a(f"v_lshlrev_b32 v{KL + 2 * rho + h}, 16, v{R.k + 2 * rho + h}")
            a(f"v_and_b32 v{R.k + 2 * rho + h}, 0xffff0000, v{R.k + 2 * rho + h}")
    base = (KL, R.k)
    for j in range(4):
        for s in range(4):
            for pi in range(2):
                d = AC + s * 4 + 2 * pi
                src = vr(base[pi] + 2 * (s + 3 - j), 2)
                c = vr(CF + j * 4 + 2 * pi, 2)
                if j == 0:
                    a(f"v_pk_mul_f32 {vr(d, 2)}, {src}, {c}")
                else:
                    a(f"v_pk_fma_f32 {vr(d, 2)}, {src}, {c}, {vr(d, 2)}")
    a(wait_v)
    for r in range(4):
        for h in range(2):
            a(f"v_lshlrev_b32 v{KL + 2 * r + h}, 16, v{R.v + 2 * r + h}")
            a(f"v_and_b32 v{R.v + 2 * r + h}, 0xffff0000, v{R.v + 2 * r + h}")
    vb = (KL, R.v)
    for s in range(4):
        for pi in range(2):
            d = AC + s * 4 + 2 * pi
            a(f"v_pk_mul_f32 {vr(d, 2)}, {vr(d, 2)}, {vr(vb[pi] + 2 * s, 2)}")
    O = CF
    for i in range(4):
        val = lambda s: AC + s * 4 + 2 * (i & 1) + (i >> 1)
        a(f"v_cvt_pk_bf16_f32 v{O + 2 * i}, v{val(3)}, v{val(2)}")
        a(f"v_cvt_pk_bf16_f32 v{O + 2 * i + 1}, v{val(1)}, v{val(0)}")
    for i in range(4):
        a(f"ds_write_b64 v{vaddr}, {vr(O + 2 * i, 2)} offset:{tile_off + i * 128}")


def ut_out_addr(a, vl, vg, tile):
    a("s_lshl_b32 s78, s3, 6")
    a(f"v_add_u32 v{vg}, s78, v0                 ; t")
    a(f"v_lshrrev_b32 v{vg + 1}, 3, v{vg}            ; channel")
    a(f"v_lshrrev_b32 v{vl}, 5, v{vg}")
    a(f"v_xor_b32 v{vl}, v{vl}, v{vg}")
    a(f"v_and_b32 v{vl}, 7, v{vl}")
    a(f"v_lshlrev_b32 v{vl}, 4, v{vl}")
    a(f"v_lshl_add_u32 v{vl}, v{vg + 1}, 7, v{vl}")
    a(f"v_add_u32 v{vl}, {tile}, v{vl}")
    a(f"v_and_b32 v{vg}, 7, v{vg}")
    a(f"v_lshlrev_b32 v{vg}, 4, v{vg}")
    a(f"v_lshl_add_u32 v{vg}, v{vg + 1}, 12, v{vg}")
    a(f"v_add_u32 v{vg + 1}, 0x20000, v{vg}")


def ut_reads(vl, dst, tile_off=0):
    return [f"ds_read_b128 {vr(dst + 4 * p, 4)}, v{vl} offset:{tile_off + 4096 * p}" for p in range(2)]


def ut_stores(vg, src, s_off):
    return [f"buffer_store_dwordx4 {vr(src + 4 * p, 4)}, v{vg + p}, {q4(SRD_WS)}, {s_off} offen sc1" for p in range(2)]


def stats_loads(a, raw, va):
    a(f"s_lshl_b32 s78, s{S_XCD}, 8")
    a(f"s_lshl_b32 s79, s{S_LOC}, 3")
    a("s_add_u32 s78, s78, s79")
    a("s_lshl_b32 s79, s3, 1")
    a("s_add_u32 s78, s78, s79")
    a(f"v_lshrrev_b32 v{va}, 5, v0")
    a(f"v_add_u32 v{va}, s78, v{va}               ; row")
    a(f"v_and_b32 v{va + 1}, 31, v0")
    a(f"v_lshlrev_b32 v{va + 1}, 3, v{va + 1}")
    a(f"v_mad_u32_u24 v{va + 1}, v{va}, s{S_K1280}, v{va + 1}")
    a(f"v_lshlrev_b32 v{va}, 3, v{va}")
    for j in range(5):
        a(f"buffer_load_dwordx2 {vr(raw + 2 * j, 2)}, v{va + 1}, {q4(SRD_Q)}, 0 offen offset:{j * 256}{nt('nt_x')}")


S_K1280 = 73


def stats_compute(a, raw, tmp, va):
    XS, XQ, M = tmp, tmp + 1, tmp + 2
    a("s_mov_b32 s78, 0x3f803f80")
    a(f"v_mov_b32 v{XS}, 0")
    a(f"v_mov_b32 v{XQ}, 0")
    for i in range(10):
        a(f"v_dot2c_f32_bf16 v{XS}, s78, v{raw + i}")
        a(f"v_dot2c_f32_bf16 v{XQ}, v{raw + i}, v{raw + i}")
    for ror in (8, 4, 2, 1):
        a("s_nop 1")
        a(f"v_add_f32_dpp v{XS}, v{XS}, v{XS} row_ror:{ror} row_mask:0xf bank_mask:0xf")
        a(f"v_add_f32_dpp v{XQ}, v{XQ}, v{XQ} row_ror:{ror} row_mask:0xf bank_mask:0xf")
    a("s_nop 1")
    a(f"v_add_f32_dpp v{XS}, v{XS}, v{XS} row_bcast:15 row_mask:0xa bank_mask:0xf")
    a(f"v_add_f32_dpp v{XQ}, v{XQ}, v{XQ} row_bcast:15 row_mask:0xa bank_mask:0xf")
    a("s_nop 0")
    a(f"v_mul_f32 v{M}, {f32(1.0 / 640)}, v{XS}      ; mean")
    a(f"v_mul_f32 v{XQ}, {f32(1.0 / 640)}, v{XQ}")
    a(f"v_fma_f32 v{XQ}, -v{M}, v{M}, v{XQ}           ; variance")
    a(f"v_max_f32 v{XQ}, 0, v{XQ}")
    a(f"v_add_f32 v{XQ}, {f32(1e-5)}, v{XQ}")
    a(f"v_rsq_f32 v{M + 1}, v{XQ}")
    a(f"s_mov_b32 s78, {WS_STATS}")
    a("s_mov_b32 exec_lo, 0x10000")
    a("s_mov_b32 exec_hi, 0x10000")
    a(f"buffer_store_dwordx2 {vr(M, 2)}, v{va}, {q4(SRD_WS)}, s78 offen sc1")
    a("s_mov_b64 exec, -1")


S_W2O = 74


def w2_addr(a, vt, vdst):
    a(f"s_and_b32 s76, s{S_LOC}, 7              ; dg")
    a(f"s_lshl_b32 s77, s{S_XCD}, 2")
    a(f"s_lshr_b32 s78, s{S_LOC}, 3")
    a("s_add_u32 s77, s77, s78                ; kappa")
    a("s_mul_i32 s78, s77, 40960")
    a("s_mul_i32 s79, s76, 160")
    a("s_add_u32 s78, s78, s79")
    a(f"s_add_u32 s79, s78, {32 * 40960}")
    a("s_cmp_lt_u32 s77, 22")
    a(f"s_cselect_b32 s79, s79, {NB_W}")
    a("s_lshl_b32 s80, s3, 6")
    for p in range(3):
        a(f"v_add_u32 v{vt}, s80, v0")
        if p:
            a(f"v_add_u32 v{vt}, {256 * p}, v{vt}")
        a(f"v_cmp_gt_u32 vcc, 320, v{vt}")
        a(f"v_subrev_u32 v{vt + 1}, 320, v{vt}")
        a(f"v_mov_b32 v{vt + 2}, s79")
        a(f"v_mov_b32 v{vt + 3}, s78")
        a(f"v_cndmask_b32 v{vt + 1}, v{vt + 1}, v{vt}, vcc")
        a(f"v_cndmask_b32 v{vt + 2}, v{vt + 2}, v{vt + 3}, vcc")
        a(f"v_mul_u32_u24 v{vt + 3}, 6554, v{vt + 1}")
        a(f"v_lshrrev_b32 v{vt + 3}, 16, v{vt + 3}            ; row")
        a(f"v_mul_u32_u24 v{vt + 4}, 10, v{vt + 3}")
        a(f"v_sub_u32 v{vt + 4}, v{vt + 1}, v{vt + 4}")
        a(f"v_mul_u32_u24 v{vt + 3}, 1280, v{vt + 3}")
        a(f"v_lshl_add_u32 v{vt + 3}, v{vt + 4}, 4, v{vt + 3}")
        a(f"v_add_u32 v{vdst + p}, v{vt + 3}, v{vt + 2}")
        if p == 2:
            a(f"v_mov_b32 v{vt + 2}, {NB_W}")
            a(f"v_cmp_gt_u32 vcc, 640, v{vt}")
            a("s_nop 1")
            a(f"v_cndmask_b32 v{vdst + p}, v{vt + 2}, v{vdst + p}, vcc")


def w2_dma(a, lds, vsrc, srd_reg):
    a("s_lshl_b32 s81, s3, 10")
    for p in range(3):
        a(f"s_add_u32 m0, s81, {lds + 4096 * p}")
        a("s_nop 0")
        a(f"buffer_load_dwordx4 v{vsrc + p}, {q4(srd_reg)}, 0 offen{nt('nt_kv')} lds")


def w2_dma_pieces(lds, vsrc, srd_reg):
    return [(["s_lshl_b32 m0, s3, 10", f"s_add_u32 m0, m0, {lds + 4096 * p}", "s_nop 0",
              f"buffer_load_dwordx4 v{vsrc + p}, {q4(srd_reg)}, 0 offen{nt('nt_kv')} lds"], "w2", 1) for p in range(3)]


def w2_read_addr(a, lds, vdst, vt):
    a(f"s_and_b32 s77, s{S_LOC}, 7              ; dg")
    a(f"s_lshl_b32 s78, s{S_XCD}, 2")
    a(f"s_lshr_b32 s79, s{S_LOC}, 3")
    a("s_add_u32 s78, s78, s79                ; kappa")
    a("s_mul_i32 s77, s77, 54")
    a("s_add_u32 s77, s77, s78")
    a("s_mul_i32 s77, s77, 5120")
    a(f"s_add_u32 s77, s77, {WS_W2F}")
    a(f"v_lshrrev_b32 v{vt}, 4, v0                 ; kq")
    a(f"v_bfe_u32 v{vt + 1}, v0, 2, 2                  ; r")
    a(f"v_lshl_add_u32 v{vt}, v{vt}, 2, v{vt + 1}")
    a(f"v_mul_u32_u24 v{vt}, 160, v{vt}")
    a(f"v_and_b32 v{vt + 1}, 3, v0                     ; c")
    for p in range(3):
        a(f"s_add_u32 s79, s3, {4 * p}              ; unit")
        a("s_cmp_ge_u32 s79, 5")
        a("s_cselect_b32 s80, 1, 0               ; tile")
        a("s_mul_i32 s81, s80, 5")
        a("s_sub_u32 s79, s79, s81")
        a(f"s_mul_i32 s81, s80, {32 * 5120}")
        a("s_add_u32 s81, s81, s77")
        a("s_lshl_b32 s82, s79, 10")
        a("s_add_u32 s81, s81, s82")
        a("s_cmp_ge_u32 s78, 22")
        a("s_cselect_b32 s82, s80, 0")
        a("s_cmp_ge_u32 s79, 5")
        a("s_cselect_b32 s82, 1, s82")
        a("s_cmp_lg_u32 s82, 0")
        a(f"s_cselect_b32 s{S_W2O + p}, {NB_WS}, s81")
        a("s_min_u32 s79, s79, 4")
        a("s_and_b32 s82, s79, 1")
        a("s_lshl_b32 s82, s82, 3")
        a("s_lshr_b32 s83, s79, 1")
        a("s_lshl_b32 s83, s83, 6")
        a("s_add_u32 s82, s82, s83")
        a("s_mul_i32 s83, s80, 5120")
        a("s_add_u32 s82, s82, s83")
        a(f"s_add_u32 s82, s82, {lds}")
        a("s_cmp_eq_u32 s79, 4")
        a("s_cselect_b32 s83, 3, 4")
        a(f"v_lshlrev_b32 v{vdst + p}, s83, v{vt + 1}")
        a(f"v_add3_u32 v{vdst + p}, v{vdst + p}, v{vt}, s82")


def w2_reads(vaddr, dst):
    out = []
    for p in range(3):
        for q_ in range(2):
            out.append(f"ds_read_b64_tr_b16 {vr(dst + 4 * p + 2 * q_, 2)}, v{vaddr + p} offset:{q_ * 2560}")
    return out


def w2_stores(vl16, src):
    return [f"buffer_store_dwordx4 {vr(src + 4 * p, 4)}, v{vl16}, {q4(SRD_WS)}, s{S_W2O + p} offen sc1" for p in range(3)]


V_FLA, V_TAG = 30, 31


def tag_setup(a):
    a(f"s_add_u32 s{S_TAG}, s{S_TAG}, {TAG_STEP}")
    a(f"v_mov_b32 v{V_TAG}, s{S_TAG}")


def flag_setup(a, s_fut, tag=True):
    a(f"v_mov_b32 v{V_FLA}, {NB_WS}")
    a("s_cmp_eq_u32 s3, 0")
    a(f"s_cselect_b32 s80, {s_fut}, {NB_WS}")
    a(f"v_writelane_b32 v{V_FLA}, s80, 1")
    a(f"s_lshl_b32 s77, s{S_XCD}, 1")
    a(f"s_lshr_b32 s78, s{S_LOC}, 4")
    a("s_add_u32 s77, s77, s78")
    a("s_lshl_b32 s77, s77, 4")
    a(f"s_and_b32 s78, s{S_LOC}, 15")
    a("s_add_u32 s77, s77, s78")
    a(f"s_lshl_b32 s77, s77, {FS}")
    a(f"s_add_u32 s77, s77, {WS_FST}")
    a("s_cmp_eq_u32 s3, 0")
    a(f"s_cselect_b32 s77, s77, {NB_WS}")
    a(f"v_writelane_b32 v{V_FLA}, s77, 0")
    a(f"s_and_b32 s77, s{S_LOC}, 7")
    a("s_lshl_b32 s77, s77, 5")
    a(f"s_lshl_b32 s78, s{S_XCD}, 2")
    a(f"s_lshr_b32 s79, s{S_LOC}, 3")
    a("s_add_u32 s78, s78, s79")
    a("s_add_u32 s77, s77, s78")
    a(f"s_lshl_b32 s77, s77, {FS}")
    a(f"s_add_u32 s77, s77, {WS_FW}")
    a("s_cmp_eq_u32 s3, 0")
    a(f"s_cselect_b32 s77, s77, {NB_WS}")
    a(f"v_writelane_b32 v{V_FLA}, s77, 2")
    if tag:
        a("s_waitcnt lgkmcnt(0)")
        tag_setup(a)


def publish(a, vm, mask):
    a(f"s_mov_b32 exec_lo, {mask}")
    a("s_mov_b32 exec_hi, 0")
    a(f"buffer_store_dword v{V_TAG}, v{V_FLA}, {q4(SRD_WS)}, 0 offen sc1")
    a("s_mov_b64 exec, -1")
    vm.add("pub", 1)


N_KV = KV(96)
N_STRAW, N_STVA = 216, 226
V_W2A, V_KVT, V_UTL, V_UTG = 200, 203, 204, 205
S_UTO = 59


V_KVA, V_KVTAP, V_W2L, V_B1A = 248, 252, 253, 232
S_TAPO = 82


def normal_front(a, vm, setup):
    a(f"s_lshr_b32 s75, s{S_LOC}, 2")
    a(f"s_and_b32 s76, s{S_LOC}, 3")
    a("s_lshl_b32 s76, s76, 3")
    a(f"s_add_u32 s76, s76, s{S_XCD}")
    kv_addr(a, 76, 14)
    a("s_lshl_b32 s79, s75, 7")
    kv_col(a, 14, V_KVA, "s79")
    a(f"v_lshl_add_u32 v{V_KVTAP}, s75, 9, v18")
    a("s_lshl_b32 s79, s75, 18")
    a("s_lshl_b32 s80, s76, 7")
    a(f"s_add_u32 s{S_UTO}, s79, s80")
    a(f"s_add_u32 s{S_UTO}, s{S_UTO}, {WS_UT}")
    a("s_lshl_b32 s84, s75, 5")
    a("s_add_u32 s84, s84, s76")
    a(f"s_lshl_b32 s84, s84, {FS}")
    a(f"s_add_u32 s84, s84, {WS_FUT}")
    gemm1_setup(a)
    a(f"s_movk_i32 s{S_K1280}, 1280")
    entry_ptrs(a)
    if KVC is not None:
        normal_front_kv_late(a, vm, setup)
        return
    kv_srds(a)
    Prof.stamp(a, "n_ptr")
    for x in kv_load_list(N_KV, V_KVA, V_KVTAP, "0"):
        if "nokvld" not in OPT or q4(SRD_D) in x:
            a(x)
    vm.add("kv", NKV if "nokvld" not in OPT else 2)
    Prof.stamp(a, "n_kv")
    visit_pages(a, "N")
    Prof.stamp(a, "n_vis")
    stats_loads(a, N_STRAW, N_STVA)
    vm.add("st_raw", 5)
    srd(a, SRD_B, P_W2, NB_W)
    if "w2front" in OPT:
        w2_addr(a, 24, V_W2L)
        w2_dma(a, LDS_A4, V_W2L, SRD_B)
        vm.add("w2", 3)
    srd(a, SRD_A, P_W1, NB_W)
    r = Asm()
    front_setup(r, setup)
    interleave(a, vm, stage_pieces(0), r.lines)
    Prof.stamp(a, "st0")
    r = Asm()
    kv_compute(r, N_KV, 128, 144, 160, V_KVT, 0, "WAIT kv 4", "WAIT kv 0")
    r("WAIT st_raw 0")
    n_st = len(r.lines)
    stats_compute(r, N_STRAW, 228, N_STVA)
    interleave(a, vm, stage_pieces(1) + w1_touch(), r.lines, KV_FRAC)
    vm.add("st_st", 1)
    Prof.stamp(a, "issued")


def front_setup(r, setup):
    r(f"s_lshl_b32 s{S_FT0}, s{S_CG}, 3")
    r(f"s_lshl_b32 s73, s{S_WF}, 2")
    r(f"s_add_u32 s{S_FT0}, s{S_FT0}, s73")
    r(f"s_lshl_b32 s73, s{S_WS}, 1")
    for T in range(4):
        r(f"s_add_u32 s74, s73, {T}")
        r("s_and_b32 s74, s74, 3")
        r(f"s_add_u32 s{S_TILE + T}, s74, s{S_FT0}")
    srd(r, SRD_WS, P_WS, NB_WS)
    kv_tile_addr(r, V_KVT, LDS_UT)
    ut_out_addr(r, V_UTL, V_UTG, LDS_UT)
    if "w2front" not in OPT:
        w2_addr(r, 24, V_W2L)
    w2_read_addr(r, LDS_A4, V_W2A, 24)
    r("v_lshlrev_b32 v14, 4, v0")
    setup(r)


KVL = None
KVC = None


def kv_late_loads():
    r = Asm()
    srd(r, SRD_B, P_W2, NB_W)
    return [(x, "kv", 1) for x in kv_load_list(N_KV, V_KVA, V_KVTAP, "0")] + [r.lines]


def normal_front_kv_late(a, vm, setup):
    stats_loads(a, N_STRAW, N_STVA)
    vm.add("st_raw", 5)
    srd(a, SRD_A, P_W1, NB_W)
    r = Asm()
    front_setup(r, setup)
    kv_srds(r)
    interleave(a, vm, stage_pieces(0), r.lines)
    Prof.stamp(a, "st0")
    visit_pages(a, "N", mark=False)
    for p in stage_pieces(1) + (kv_late_loads() if KVL == "f" else []):
        if isinstance(p, tuple):
            emit(a, p[0])
            vm.add(p[1], p[2])
        else:
            emit(a, p)
    vm.wait(a, "st_raw")
    stats_compute(a, N_STRAW, 228, N_STVA)
    vm.add("st_st", 1)
    Prof.stamp(a, "issued")


def late_setup():
    out = {}
    r = Asm()
    flag_setup(r, "s84", tag=False)
    out["flag"] = r.lines
    r = Asm()
    srd(r, SRD_C, P_B1, F * 2)
    r("v_lshrrev_b32 v24, 4, v0               ; g")
    for T in range(4):
        r(f"s_lshl_b32 s73, s{S_TILE + T}, 5")
        r(f"v_lshl_add_u32 v{V_B1A + T}, v24, 3, s73")
    out["b1a"] = r.lines
    return out


KV_FRAC = 0.8


def stage_pieces(t):
    out = []
    for lst in (dma_x(t), dma_w(t)):
        out.append([lst[0], "s_nop 0"])
        out += [(x, f"st{t}", 1) if isinstance(x, str) else x for x in lst[1:]]
    return out


W1T = 4


def w1_touch():
    if "w1t" not in OPT:
        return []
    return [[f"s_add_u32 s88, s{S_W}, {(W1T - 2) * 64 * 3456}",
             f"s_cmp_ge_u32 s88, s{S_WE}",
             f"s_cselect_b32 s89, {640 * 3456}, 0",
             "s_sub_u32 s88, s88, s89",
             "v_bfe_u32 v127, v0, 1, 4",
             "v_mul_u32_u24 v127, 3456, v127",
             "v_and_b32 v126, 1, v0",
             "v_lshl_add_u32 v127, v126, 7, v127"],
            (f"buffer_load_dword v127, v127, {q4(SRD_A)}, s88 offen", "w1t", 1)]


def bias_loads():
    return [(f"buffer_load_dwordx2 {vr(B1R + 2 * T, 2)}, v{V_B1A + T}, {q4(SRD_C)}, 0 offen", "b1", 1) for T in range(4)]


I_KV = [KV(96), KV(126), KV(156)]
I_STRAW, I_STVA = 186, 196
I_W2L = 80


S_ICH = 84


def idle_channel(a):
    a(f"s_mul_i32 s{S_ICH}, s{S_XCD}, 24")
    a(f"s_sub_u32 s78, s{S_LOC}, 28")
    a("s_mul_i32 s78, s78, 6")
    a(f"s_add_u32 s{S_ICH}, s{S_ICH}, s78")
    a(f"s_add_u32 s{S_ICH}, s{S_ICH}, 448")


def idle_front(a, vm, filter_loads, filter_build, touch=()):
    a(f"s_movk_i32 s{S_K1280}, 1280")
    a(f"s_sub_u32 s76, s{S_LOC}, 28")
    a("s_lshl_b32 s76, s76, 3")
    a(f"s_add_u32 s76, s76, s{S_XCD}")
    kv_addr(a, 76, 14)
    entry_ptrs(a)
    kv_srds(a)

    def loads(gi):
        a(f"s_movk_i32 s79, {(7 + gi) * 128}")
        a(f"s_movk_i32 s80, {(7 + gi) * 512}")
        kv_loads(a, I_KV[gi], 14, "s79", "s80")
        vm.add(f"kv{gi}", NKV)

    def compute(gi):
        w = f"s_waitcnt vmcnt({min(vm.after(f'kv{gi}'), 63)})"
        wk = f"s_waitcnt vmcnt({min(vm.after(f'kv{gi}') + 4, 63)})"
        kv_compute(a, I_KV[gi], 208, 224, 240, V_KVT, 8192 * gi, wk, w)

    loads(0)
    visit_pages(a, "I")
    if "ift" in OPT:
        idle_channel(a)
        srd(a, SRD_A, P_SSM, D * S * 2)
        a(f"s_add_u32 s78, s{S_ICH}, s3")
        a("s_lshl_b32 s78, s78, 12")
        a("v_lshlrev_b32 v47, 6, v0")
        a(f"buffer_load_dword v47, v47, {q4(SRD_A)}, s78 offen")
        vm.add("ift", 1)
    a("s_lshl_b32 s80, s76, 7")
    a(f"s_add_u32 s{S_UTO}, s80, {WS_UT + 7 * 262144}")
    a(f"s_lshl_b32 s68, s76, {FS}")
    a(f"s_add_u32 s68, s68, {WS_FUT + (7 * 32 << FS)}")
    w2_addr(a, 24, I_W2L)
    kv_tile_addr(a, V_KVT, LDS_UT)
    ut_out_addr(a, V_UTL, V_UTG, LDS_UT)
    loads(1)
    compute(0)
    loads(2)
    early = "iflate" not in OPT
    if "bt" in OPT:
        for vt, ptr, nb in ((198, P_B1, F * 2), (199, P_B2, D * 2)):
            srd(a, SRD_WS, ptr, nb)
            a(f"v_min_u32 v{vt}, {nb // 128 - 1}, v0")
            a(f"v_lshlrev_b32 v{vt}, 7, v{vt}")
            a(f"buffer_load_dword v{vt}, v{vt}, {q4(SRD_WS)}, 0 offen")
            vm.add("bt", 1)
    srd(a, SRD_WS, P_WS, NB_WS)
    flag_setup(a, "s68")
    compute(1)
    if early:
        vm.add("filt", filter_loads(a))
    stats_loads(a, I_STRAW, I_STVA)
    vm.add("st_raw", 5)
    srd(a, SRD_D, P_W2, NB_W)
    for g, tag, cnt in touch:
        emit(a, g)
        vm.add(tag, cnt)
    Prof.stamp(a, "issued")
    w2_read_addr(a, LDS_A4I, V_W2A, 24)
    compute(2)
    a("s_waitcnt lgkmcnt(0)")
    a("s_barrier")
    Prof.stamp(a, "i_kv")
    for gi in range(3):
        for x in ut_reads(V_UTL, 208 + 8 * gi, 8192 * gi):
            a(x)
    for gi in range(3):
        a(f"s_waitcnt lgkmcnt({2 * (2 - gi)})")
        for x in ut_stores(V_UTG, 208 + 8 * gi, f"s{S_UTO}"):
            a(x)
        a(f"s_add_u32 s{S_UTO}, s{S_UTO}, 262144")
    vm.add("ut_st", 6)
    Prof.stamp(a, "i_ut")
    vm.wait(a, "st_raw")
    stats_compute(a, I_STRAW, 232, I_STVA)
    vm.add("st_st", 1)
    Prof.stamp(a, "i_st")
    vm.wait(a, "ut_st")
    a("s_barrier")
    publish(a, vm, 2)
    Prof.stamp(a, "i_pub")
    if not early:
        vm.add("filt", filter_loads(a))
    w2_dma(a, LDS_A4I, I_W2L, SRD_D)
    vm.add("w2", 3)
    Prof.stamp(a, "i_fl")
    vm.wait(a, "filt")
    a.label("I_LATE")
    Prof.stamp(a, "i_fw")
    filter_build(a)
    Prof.stamp(a, "i_fb")


def idle_w2_stores(a, vm):
    vm.wait(a, "w2")
    a("s_barrier")
    publish(a, vm, 1)
    for x in w2_reads(V_W2A, 236):
        a(x)
    a("v_lshlrev_b32 v26, 4, v0")
    a("s_waitcnt lgkmcnt(0)")
    for x in w2_stores(26, 236):
        a(x)
    vm.add("w2_st", 3)
    Prof.stamp(a, "i_w2")


def idle_w2_publish(a, vm):
    vm.wait(a, "w2_st")
    a("s_barrier")
    publish(a, vm, 4)
```

```python
from fcommon import *
from f_front import *

V_A, V_B = 2, 10
V_ONES = 20
SET = [(32, 48), (64, 80)]
ACC, CSA = 128, 192
STAT, CS, B1F = 200, 216, 232


def reads(t, h, rset):
    A, B = SET[rset]
    slot = t % NST
    hi = slot >> 1
    base = (slot & 1) * STAGE
    out = []
    for T in range(4):
        out.append(f"ds_read_b128 {vr(B + 4 * T, 4)}, v{V_B + 2 * hi + h} offset:{base + T * 2048}")
        for q in range(2):
            out.append(f"ds_read_b64_tr_b16 {vr(A + 4 * T + 2 * q, 2)}, v{V_A + 4 * hi + T} offset:{base + 16384 + h * 8192 + q * 1024}")
    return out


def mfmas(rset, first=False):
    A, B = SET[rset]
    out = []
    for T in range(4):
        for sg in range(4):
            c = ACC + (T * 4 + sg) * 4
            src = "0" if first else vr(c, 4)
            out.append(f"v_mfma_f32_16x16x32_bf16 {vr(c, 4)}, {vr(A + 4 * T, 4)}, {vr(B + 4 * sg, 4)}, {src}")
        if T < 2:
            c = CSA + 4 * T
            src = "0" if first else vr(c, 4)
            out.append(f"v_mfma_f32_16x16x32_bf16 {vr(c, 4)}, {vr(A + 4 * T, 4)}, {vr(V_ONES, 4)}, {src}")
    return out


def half(a, vm, main, rd, dma, extra=(), pre=()):
    n = max(len(main), 1)
    gaps = [[] for _ in range(n)]
    for i, r in enumerate(rd):
        gaps[min(i, n - 1)].append(r)
    for i, x in enumerate(pre):
        gaps[i].append(x)
    if dma:
        np_ = len(pre)
        pos = [0, 2, 6, 11, 15, 16] if not pre else ([5, 7, 10, 13, 15, 16] if np_ <= 5 else [9, 11, 13, 14, 15, 16])
        for p, x in zip(pos, dma):
            gaps[min(p, n - 1)].append(x)
    lo = 4
    if "vtail" in OPT and not dma:
        nv = sum(1 for x in extra if isinstance(x, tuple))
        first = max(len(rd), n - max(nv, n - len(rd)))
        k, pend = 0, []
        for x in extra:
            if isinstance(x, tuple):
                p = first + (k * (n - first)) // max(nv, 1)
                for j, y in enumerate(pend):
                    gaps[max(0, p - len(pend) + j)].append(y)
                pend = []
                gaps[p].append(x)
                k += 1
            else:
                pend.append(x)
        for j, y in enumerate(pend):
            gaps[n - 1].append(y)
        extra = ()
    for k, x in enumerate(extra):
        gaps[lo + (k * (n - lo)) // len(extra)].append(x)
    for i in range(n):
        if i < len(main):
            a(main[i])
        for x in gaps[i]:
            if isinstance(x, tuple):
                emit(a, x[0])
                vm.add(x[1], x[2])
            else:
                emit(a, x)


def tagged(lst, tag):
    return [(x, tag, 1) if isinstance(x, str) and x.startswith("buffer_") else x for x in lst]


def read_bases(a):
    a("v_and_b32 v1, 15, v0                    ; j")
    a("v_lshrrev_b32 v17, 4, v0                ; g / kq")
    a("v_bfe_u32 v18, v0, 2, 2                 ; r")
    a("v_and_b32 v19, 3, v0                    ; c")
    a("v_and_b32 v24, 1, v17")
    a("v_lshl_or_b32 v24, v24, 2, v18          ; sigma")
    a("v_lshl_add_u32 v25, v17, 3, v18         ; 8*kq + r")
    a("v_lshlrev_b32 v25, 8, v25")
    a("v_lshl_add_u32 v25, v19, 3, v25         ; + 8*c")
    for T in range(4):
        a(f"s_and_b32 s73, s{S_TILE + T}, 7")
        a("v_xor_b32 v26, s73, v24")
        a(f"v_lshl_add_u32 v{V_A + T}, v26, 5, v25")
        a(f"v_add_u32 v{V_A + 4 + T}, 0x10000, v{V_A + T}")
    a(f"s_lshl_b32 s73, s{S_WS}, 13")
    a("v_and_b32 v24, 7, v1")
    a("v_xor_b32 v24, v24, v17")
    a("v_lshlrev_b32 v24, 4, v24")
    a("v_lshl_add_u32 v24, v1, 7, v24")
    a(f"v_add_u32 v{V_B}, s73, v24")
    a(f"v_xor_b32 v{V_B + 1}, 64, v{V_B}")
    a(f"v_add_u32 v{V_B + 2}, 0x10000, v{V_B}")
    a(f"v_add_u32 v{V_B + 3}, 0x10000, v{V_B + 1}")
    for i in range(4):
        a(f"v_mov_b32 v{V_ONES + i}, 0x3f803f80")
    a(f"s_lshl_b32 s{S_ROW0}, s{S_RB}, 7")
    a(f"s_lshl_b32 s73, s{S_WS}, 6")
    a(f"s_add_u32 s{S_ROW0}, s{S_ROW0}, s73")


def own_check(a, vm, tag, vflag, vaddr, nregs, label):
    a(f"s_waitcnt vmcnt({min(vm.after(tag), 63)})")
    poll(a, vflag, vaddr, "0", nregs, label, first_issued=True)


V_P1A, V_P2A = 28, 27
V_P1, V_P2 = 29, 24


def poll_addresses(a):
    a(f"v_and_b32 v{V_P1A}, 15, v0")
    a(f"v_lshlrev_b32 v{V_P1A}, {FS}, v{V_P1A}")
    a(f"s_lshl_b32 s73, s{S_RB}, {FS + 4}")
    a(f"s_add_u32 s73, s73, {WS_FST}")
    a(f"v_add_u32 v{V_P1A}, s73, v{V_P1A}")


def p2_address(a, s_grp, s_dg):
    a(f"v_and_b32 v{V_P2A}, 31, v0")
    a(f"v_lshlrev_b32 v{V_P2A}, {FS}, v{V_P2A}")
    a(f"s_lshl_b32 s73, {s_grp}, {FS + 5}")
    a(f"s_add_u32 s73, s73, {WS_FUT}")
    a(f"s_lshl_b32 s78, {s_dg}, {FS + 5}")
    a(f"s_add_u32 s78, s78, {WS_FW}")
    a("v_mov_b32 v16, s73")
    a("v_mov_b32 v18, s78")
    a("v_and_b32 v19, 32, v0")
    a("v_cmp_eq_u32 vcc, 0, v19")
    a("s_nop 1")
    a("v_cndmask_b32 v16, v18, v16, vcc")
    a(f"v_add_u32 v{V_P2A}, v16, v{V_P2A}")


S_WM = 50
G0 = 0
T_W2C = 9
T_W2L = 8
T_W2D = 2
T_P1 = 9
W2R = 216


def gen_gemm1_main(a, vm, hook, tail, after_w2chk, w2chk=True):
    for t in range(NT):
        n = vm.after(f"st{t}")
        a(f"s_waitcnt vmcnt({min(n, 63)}) lgkmcnt(0)")
        if t == T_P1:
            own_check(a, vm, "p1", V_P1, V_P1A, 1, "P1")
        if t == T_W2C and w2chk:
            a(f"s_waitcnt vmcnt({min(vm.after('p2w'), 63)})")
            a(f"s_mov_b32 s{S_WM}, 0")
            a(f"s_mov_b32 s{S_WM + 1}, -1")
            poll(a, V_P2, V_P2A, "0", 1, "P2W", mask=S_WM, first_issued=True)
        a("s_barrier")
        Prof.stamp(a, f"t{t}")
        if t == 0:
            tag_setup(a)
        front = "w2front" in OPT
        import f_front as FR
        kvc = FR.KVC
        mask = 0
        if t == 2:
            mask |= 7 if front else (3 if kvc is None else 1)
        if kvc is not None and t == kvc + 3:
            mask |= 2
        if t == T_W2D + 4 and not front:
            mask |= 4
        if mask:
            publish(a, vm, mask)
        if t == T_P1 - 2:
            a(f"buffer_load_dword v{V_P1}, v{V_P1A}, {q4(SRD_WS)}, 0 offen sc1")
            vm.add("p1", 1)
        if t == T_W2L and w2chk:
            a(f"buffer_load_dword v{V_P2}, v{V_P2A}, {q4(SRD_WS)}, 0 offen sc1")
            vm.add("p2w", 1)
        if t == T_W2C and w2chk:
            after_w2chk(a)
        more = t + LOOK < NT
        dx = tagged(dma_x(t + LOOK), f"st{t + LOOK}") if more else None
        dw = tagged(dma_w(t + LOOK), f"st{t + LOOK}") if more else None
        ex0 = hook(t, 0)
        if t == 0:
            for x in reads(0, 0, 0) + (ut_reads(V_UTL, 96) if kvc is None else []) + (w2_reads(V_W2A, W2R) if front else []):
                a(x)
            if FR.KVL == "s":
                for p in kv_late_loads():
                    if isinstance(p, tuple):
                        emit(a, p[0])
                        vm.add(p[1], p[2])
                    else:
                        emit(a, p)
            a(dx[0])
            a("s_nop 0")
            for x in dx[1:]:
                if isinstance(x, tuple):
                    a(x[0])
                    vm.add(x[1], 1)
                else:
                    emit(a, x)
        else:
            pre, rd = [], reads(t, 0, 0)
            if t == T_W2D and not front and "now2" not in OPT:
                pre = w2_dma_pieces(LDS_A4, V_W2L, SRD_B)
            if t == T_W2D + 2 and not front and "now2" not in OPT:
                rd = rd + w2_reads(V_W2A, W2R)
            if kvc is not None and t == kvc + 1:
                rd = rd + ut_reads(V_UTL, 96)
            half(a, vm, mfmas(1), rd, dx, ex0, pre)
        a("s_waitcnt lgkmcnt(0)")
        ex1 = hook(t, 1)
        pre = []
        if t == (0 if kvc is None else kvc + 1):
            pre = tagged(ut_stores(V_UTG, 96, f"s{S_UTO}"), "sa_st") + (tagged(w2_stores(14, W2R), "w2_st") if front else [])
        if t == T_W2D + 2 and not front and "now2" not in OPT:
            pre = pre + tagged(w2_stores(14, W2R), "w2_st")
        half(a, vm, mfmas(0, first=(t == 0)), reads(t, 1, 1), dw, ex1, pre)
        if t == kvc:
            a("s_nop 3")
            n = vm.after("kv")
            kv_compute(a, N_KV, SET[0][0], SET[0][1], 208, V_KVT, 0, f"s_waitcnt vmcnt({min(n + 4, 63)})", f"s_waitcnt vmcnt({min(n, 63)})")
    a("s_waitcnt lgkmcnt(0)")
    ms = mfmas(1)
    early = "gslate" not in OPT
    if early:
        cs = [x for x in ms if f"{vr(V_ONES, 4)}" in x]
        ms = cs + [x for x in ms if x not in cs]
    gaps = [[] for _ in ms]
    if early:
        gaps[10].append(["s_mov_b32 exec_lo, 0x00010001", "s_mov_b32 exec_hi, 0x00010001"] +
                        [f"ds_write_b128 v{gelu_regs()[0] + T}, {vr(CSA + 4 * T, 4)}" for T in range(2)] + ["s_mov_b64 exec, -1"])
        free = [i for i in range(len(ms)) if i != 10]
        gb = gelu_bias(vm)
        for k, g in enumerate(gb):
            gaps[free[(k * len(free)) // len(gb)]].append(g)
    for k, (g, tag, cnt) in enumerate(tail):
        gaps[1 + (k * (len(ms) - 2)) // max(len(tail), 1)].append(g)
        vm.add(tag, cnt)
    weave(a, ms, gaps)


def b1f(T):
    if "xlate" in OPT or "gslate" in OPT:
        return B1F + 4 * T
    return (40, 44, 56, 60)[T]


def gelu_regs():
    return (248, 252, 254) if "xlate" in OPT else (108, 112, 114)


V_CSA, V_K1, V_ONE = 248, 252, 254
GK = -2.0 * 0.7978845608028654 * 1.4426950408889634


def gelu_addresses():
    out = []
    V_CSA, V_K1, V_ONE = gelu_regs()
    for T in range(4):
        out.append([f"s_and_b32 s73, s{S_TILE + T}, 7", "s_lshl_b32 s73, s73, 6", f"s_add_u32 s73, s73, {LDS_CS}",
                    f"v_lshl_add_u32 v{V_CSA + T}, v17, 4, s73"])
    out += [f"v_mov_b32 v{V_K1}, {f32(GK * 0.044715)}", f"v_mov_b32 v{V_K1 + 1}, {f32(GK * 0.044715)}",
            f"v_mov_b32 v{V_ONE}, 1.0", f"v_mov_b32 v{V_ONE + 1}, 1.0"]
    return out


def gelu_bias(vm):
    out = [f"s_waitcnt vmcnt({min(vm.after('b1'), 63)})"]
    for T in range(4):
        for h in range(2):
            out.append(f"v_lshlrev_b32 v{b1f(T) + 2 * h}, 16, v{B1R + 2 * T + h}")
            out.append(f"v_and_b32 v{b1f(T) + 2 * h + 1}, 0xffff0000, v{B1R + 2 * T + h}")
    out += [f"s_mov_b32 s74, {f32(GK)}", f"s_mov_b32 s75, {f32(GK)}",
            f"s_lshr_b32 s76, s{S_ROW0}, 4", "s_mul_i32 s76, s76, 55296", f"s_add_u32 s76, s76, {WS_HF}",
            [f"s_cmp_ge_u32 s{S_FT0}, 108", f"s_cselect_b32 s76, {NB_WS}, s76"],
            "v_lshlrev_b32 v18, 4, v0"]
    return out


def gen_gelu(a, vm, after_p2, first, fillers, scalar=()):
    early = "gslate" not in OPT
    if not early:
        a("s_nop 7")
        a("v_cmp_eq_u32 vcc, 0, v1")
        a("s_and_saveexec_b64 s[80:81], vcc")
        for T in range(2):
            a(f"s_and_b32 s73, s{S_TILE + T}, 7")
            a("s_lshl_b32 s73, s73, 6")
            a(f"s_add_u32 s73, s73, {LDS_CS}")
            a("v_lshl_add_u32 v18, v17, 4, s73")
            a(f"ds_write_b128 v18, {vr(CSA + 4 * T, 4)}")
        a("s_mov_b64 exec, s[80:81]")
    own_check(a, vm, "p2", V_P2, V_P2A, 1, "P2")
    Prof.stamp(a, "g_p2")
    after_p2(a)
    first = list(first)

    def pop(n=1):
        for _ in range(n):
            if first:
                g, tag, cnt = first.pop(0)
                emit(a, g)
                vm.add(tag, cnt)

    K = GK
    if early:
        a("s_waitcnt lgkmcnt(0)")
        a("s_barrier")
        for T in range(4):
            a(f"ds_read_b128 {vr(CS + 4 * T, 4)}, v{gelu_regs()[0] + T}")
        pop(3)
        a(f"s_waitcnt vmcnt({min(vm.after('stats'), 63)})")
        for sg in range(4):
            a(f"v_mul_f32 v{STAT + 2 * sg}, v{STAT + 2 * sg}, v{STAT + 2 * sg + 1}")
            a(f"v_sub_f32 v{STAT + 2 * sg}, 0, v{STAT + 2 * sg}")
        pop(len(first))
        a("s_waitcnt lgkmcnt(0)")
        vK1, vONE = gelu_regs()[1:]
    else:
        vK1, vONE = 28, 30
        pop(2)
        a("s_waitcnt lgkmcnt(0)")
        a("s_barrier")
        for T in range(4):
            a(f"s_and_b32 s73, s{S_TILE + T}, 7")
            a("s_lshl_b32 s73, s73, 6")
            a(f"s_add_u32 s73, s73, {LDS_CS}")
            a("v_lshl_add_u32 v18, v17, 4, s73")
            a(f"ds_read_b128 {vr(CS + 4 * T, 4)}, v18")
        pop(1)
        vm.wait(a, "stats")
        for T in range(4):
            for h in range(2):
                a(f"v_lshlrev_b32 v{B1F + 4 * T + 2 * h}, 16, v{B1R + 2 * T + h}")
                a(f"v_and_b32 v{B1F + 4 * T + 2 * h + 1}, 0xffff0000, v{B1R + 2 * T + h}")
            pop(1)
        for sg in range(4):
            a(f"v_mul_f32 v{STAT + 2 * sg}, v{STAT + 2 * sg}, v{STAT + 2 * sg + 1}")
            a(f"v_sub_f32 v{STAT + 2 * sg}, 0, v{STAT + 2 * sg}")
        pop(1)
        a(f"s_mov_b32 s74, {f32(K)}")
        a(f"s_mov_b32 s75, {f32(K)}")
        a(f"v_mov_b32 v28, {f32(K * 0.044715)}")
        a(f"v_mov_b32 v29, {f32(K * 0.044715)}")
        a("v_mov_b32 v30, 1.0")
        a("v_mov_b32 v31, 1.0")
        a(f"s_lshr_b32 s76, s{S_ROW0}, 4")
        a("s_mul_i32 s76, s76, 55296")
        a(f"s_add_u32 s76, s76, {WS_HF}")
        a("v_lshlrev_b32 v18, 4, v0")
        a(f"s_cmp_ge_u32 s{S_FT0}, 108")
        a(f"s_cselect_b32 s76, {NB_WS}, s76")
        pop(len(first))
        a("s_waitcnt lgkmcnt(0)")
    X, P_, E = 32, 48, 64
    nf = len(fillers)
    fi = 0
    for n8, (sg, pr) in enumerate([(sg, pr) for sg in range(4) for pr in range(2)]):
        Prof.stamp(a, f"ge{n8}")
        tiles = (2 * pr, 2 * pr + 1)
        st = STAT + 2 * sg
        want = (nf * max(n8 + 1 - G0, 0)) // (8 - G0)
        mine = fillers[fi:want]
        fi = want
        body = []
        for n, T in enumerate(tiles):
            for h in range(2):
                body.append(f"v_pk_fma_f32 {vr(X + 4 * n + 2 * h, 2)}, {vr(CS + 4 * T + 2 * h, 2)}, {vr(st, 2)}, {vr(b1f(T) + 2 * h, 2)} op_sel_hi:[1,0,1]")
        for n, T in enumerate(tiles):
            c = ACC + (T * 4 + sg) * 4
            for h in range(2):
                body.append(f"v_pk_fma_f32 {vr(X + 4 * n + 2 * h, 2)}, {vr(c + 2 * h, 2)}, {vr(st, 2)}, {vr(X + 4 * n + 2 * h, 2)} op_sel:[0,1,0] op_sel_hi:[1,1,1]")
        for i in range(4):
            body.append(f"v_pk_mul_f32 {vr(P_ + 2 * i, 2)}, {vr(X + 2 * i, 2)}, {vr(X + 2 * i, 2)}")
        for i in range(4):
            body.append(f"v_pk_fma_f32 {vr(P_ + 2 * i, 2)}, {vr(P_ + 2 * i, 2)}, {vr(vK1, 2)}, s[74:75]")
        for i in range(4):
            body.append(f"v_pk_mul_f32 {vr(P_ + 2 * i, 2)}, {vr(P_ + 2 * i, 2)}, {vr(X + 2 * i, 2)}")
        for i in range(8):
            body.append(f"v_exp_f32 v{E + i}, v{P_ + i}")
        for i in range(4):
            body.append(f"v_pk_add_f32 {vr(E + 2 * i, 2)}, {vr(E + 2 * i, 2)}, {vr(vONE, 2)}")
        for i in range(8):
            body.append(f"v_rcp_f32 v{E + i}, v{E + i}")
        body.append("s_nop 0")
        for i in range(4):
            body.append(f"v_pk_mul_f32 {vr(X + 2 * i, 2)}, {vr(X + 2 * i, 2)}, {vr(E + 2 * i, 2)}")
        O = ACC + (tiles[0] * 4 + sg) * 4 if "o4" not in OPT else 80 + 4 * (n8 % 4)
        for i in range(4):
            body.append(f"v_cvt_pk_bf16_f32 v{O + i}, v{X + 2 * i}, v{X + 2 * i + 1}")
        gaps = [[] for _ in body]
        for k, g in enumerate(mine):
            gaps[(k * len(body)) // max(len(mine), 1) + 2].append(g[0])
        if n8 >= 2:
            sc = scalar[((n8 - 2) * len(scalar)) // 6:((n8 - 1) * len(scalar)) // 6]
            slots = [k for k, x in enumerate(body) if x.startswith(("v_exp", "v_rcp"))]
            assert len(sc) <= len(slots)
            for k, g in enumerate(sc):
                gaps[slots[(k * len(slots)) // len(sc)]].append(g)
        weave(a, body, gaps)
        for g in mine:
            vm.add(g[1], g[2])
        a(f"s_lshr_b32 s73, s{S_TILE + 2 * pr}, 1")
        a("s_lshl_b32 s73, s73, 10")
        a("s_add_u32 s73, s73, s76")
        if sg:
            a(f"s_add_u32 s73, s73, {sg * 55296}")
        a(f"buffer_store_dwordx4 {vr(O, 4)}, v18, {q4(SRD_WS)}, s73 offen sc1" if "nohf" not in OPT else "s_nop 0")
        vm.add("hf", 1)
        if "dbl" in OPT:
            a(f"buffer_store_dwordx4 {vr(O, 4)}, v18, {q4(SRD_WS)}, s73 offen")
            vm.add("hf", 1)
```

```python
from fcommon import *

NSTEP = 14
NPRE = 12
S_A2, S_RBK, S_DG = 52, 53, 54
S_KB = 55
S_AE, S_AT, S_ROT = 16, 17, 28
S_YCH, S_YHF = 84, 87
S_BO, S_BE, S_BD, S_BC, S_BT = 60, 61, 62, 63, 64
V_L16, V_L16B = 14, 15
V_BA = 24
V_XO = 28
AV = 196
BBUF = [[48, 52, 56, 60], [64, 68, 72, 76], [80, 84, 88, 92], [96, 100, 236, 240], [32, 36, 40, 44]]
NB = len(BBUF)
PF = 4
ACC2 = 104
YR = 184
A_B2 = 240
XR, STAT2 = 244, 254
LDS_RED = 0
LDS_Y = 120832
FLAG_STEP = 2
FY_LEAD = 3
FY_EXTRA = []
FY_XGAP = 18
FY_STEP = 10


def coords(a):
    a(f"s_lshr_b32 s78, s{S_XCD}, 1")
    a("s_lshl_b32 s78, s78, 3")
    a(f"s_and_b32 s79, s{S_LOC}, 7")
    a(f"s_add_u32 s{S_RBK}, s78, s79")
    a(f"s_mul_i32 s{S_ROT}, s79, 7")
    a(f"s_and_b32 s78, s{S_XCD}, 1")
    a("s_lshl_b32 s78, s78, 2")
    a(f"s_lshr_b32 s79, s{S_LOC}, 3")
    a(f"s_add_u32 s{S_DG}, s78, s79")
    a("s_mul_i32 s79, s79, 14")
    a(f"s_add_u32 s{S_ROT}, s{S_ROT}, s79")
    a(f"s_lshr_b32 s{S_ROT}, s{S_ROT}, 2")
    a(f"s_cmp_ge_u32 s{S_ROT}, {NSTEP}")
    a(f"s_cselect_b32 s79, {NSTEP}, 0")
    a(f"s_sub_u32 s{S_ROT}, s{S_ROT}, s79")
    if "rot3" in OPT:
        a(f"s_lshr_b32 s79, s{S_LOC}, 3")
        a("s_mul_i32 s79, s79, 14")
        a(f"s_lshr_b32 s{S_ROT}, s79, 2")
    elif "rot4" in OPT:
        a(f"s_lshr_b32 s{S_ROT}, s{S_LOC}, 3")
    elif "rot5" in OPT:
        a(f"s_lshr_b32 s79, s{S_LOC}, 3")
        a(f"s_lshl_b32 s{S_ROT}, s79, 1")
    elif "rot2" not in OPT:
        a(f"s_mov_b32 s{S_ROT}, 0")
    a(f"s_mul_i32 s{S_KB}, s3, 14")
    a("s_sub_u32 s79, s3, 1")
    a("s_cmp_ge_u32 s3, 2")
    a("s_cselect_b32 s79, s79, 0")
    a(f"s_sub_u32 s{S_KB}, s{S_KB}, s79                ; kbase")
    a(f"s_mul_i32 s79, s{S_DG}, 54")
    a(f"s_add_u32 s79, s79, s{S_KB}")
    a("s_mul_i32 s79, s79, 5120")
    a(f"s_add_u32 s79, s79, {WS_W2F}")
    a(f"s_add_u32 s{S_AE}, s79, {NSTEP * 5120}")
    a(f"s_mul_i32 s{S_A2}, s{S_ROT}, 5120")
    a(f"s_add_u32 s{S_A2}, s{S_A2}, s79")
    a(f"v_lshlrev_b32 v{V_L16}, 4, v0")
    a(f"v_add_u32 v{V_L16B}, 4096, v{V_L16}")


def a_loads(i):
    out = []
    for T in range(5):
        dst = ar(20 * i + 4 * T, 4) if i < NPRE else vr(AV + 20 * (i - NPRE) + 4 * T, 4)
        v = V_L16 if T < 4 else V_L16B
        ins = f"buffer_load_dwordx4 {dst}, v{v}, {q4(SRD_WS)}, s{S_A2} offen offset:{(T % 4) * 1024} sc1"
        if "noafill" in OPT and i < NPRE:
            ins = "s_nop 0"
        out.append(ins if T < 4 else [ins, f"s_add_u32 s{S_A2}, s{S_A2}, {0 if 'afix' in OPT else 5120}", f"s_cmp_eq_u32 s{S_A2}, s{S_AE}",
                                      f"s_cselect_b32 s{S_AT}, {NSTEP * 5120}, 0", f"s_sub_u32 s{S_A2}, s{S_A2}, s{S_AT}"])
    return out


def b_offsets(a):
    a(f"s_mul_i32 s79, s{S_RBK}, 216")
    a(f"s_add_u32 s79, s79, s{S_KB}")
    a("s_lshl_b32 s79, s79, 10")
    a(f"s_add_u32 s79, s79, {WS_HF}")
    a(f"s_add_u32 s{S_BE}, s79, {NSTEP * 1024}")
    a("s_cmp_ge_u32 s3, 2")
    a(f"s_cselect_b32 s{S_BD}, s79, 1")
    a(f"s_lshl_b32 s{S_BO}, s{S_ROT}, 10")
    a(f"s_add_u32 s{S_BO}, s{S_BO}, s79")
    for tau in range(4):
        a(f"s_add_u32 s78, s3, {tau}")
        a("s_and_b32 s78, s78, 3       ; sigma")
        a("s_mul_i32 s78, s78, 55296")
        a(f"v_add_u32 v{V_BA + tau}, s78, v{V_L16}")


def b_loads(i, order=(0, 1, 2, 3)):
    buf = BBUF[i % NB]
    out = []
    for n, tau in enumerate(order):
        ins = f"buffer_load_dwordx4 {vr(buf[tau], 4)}, v{V_BA + tau}, {q4(SRD_WS)}, s{S_BC} offen sc1"
        if "nob2" in OPT:
            ins = "s_nop 0 ; B"
        if n == 0:
            sel = [f"s_cmp_eq_u32 s{S_BO}, s{S_BD}", f"s_cselect_b32 s{S_BC}, {NB_WS}, s{S_BO}"]
            if "nobload" in OPT:
                sel = [f"s_mov_b32 s{S_BC}, {NB_WS}"]
            if "bfix" in OPT:
                sel = [f"s_mov_b32 s{S_BC}, s{S_BO}"]
            out.append(sel + [ins])
        elif n == 3:
            out.append([ins, f"s_add_u32 s{S_BO}, s{S_BO}, {0 if 'bfix' in OPT else 1024}", f"s_cmp_eq_u32 s{S_BO}, s{S_BE}",
                        f"s_cselect_b32 s{S_BT}, {NSTEP * 1024}, 0", f"s_sub_u32 s{S_BO}, s{S_BO}, s{S_BT}"])
        else:
            out.append(ins)
    return out


def mfma2(i, T, tau):
    buf = BBUF[i % NB]
    A = ar(20 * i + 4 * T, 4) if i < NPRE else vr(AV + 20 * (i - NPRE) + 4 * T, 4)
    c = vr(ACC2 + (tau * 5 + T) * 4, 4)
    return f"v_mfma_f32_16x16x32_bf16 {c}, {A}, {vr(buf[tau], 4)}, {'0' if i == 0 and (tau or 'b2late' in OPT) else c}"


def mfmas2(i):
    return [mfma2(i, T, tau) for T in range(5) for tau in range(4)]


TAU_ORDER = (1, 2, 3, 0)


def last_order(first):
    steps = range(first, NSTEP)
    if "lbi" not in OPT:
        tiles = [(T, tau) for tau in TAU_ORDER for T in range(5)]
        return [(i, T, tau) for k in range(0, 20, 2) for i in steps for T, tau in tiles[k:k + 2]]
    return [(i, T, tau) for tau in TAU_ORDER for i in steps for T in range(5)]


def last_block():
    return [mfma2(*x) for x in last_order(NSTEP - 2)]


def wave_flag(a, base_expr_sgpr, n=1):
    a(f"v_mov_b32 v16, s{S_TAG}")
    a("v_lshlrev_b32 v17, 2, v0")
    a(f"s_mov_b32 exec_lo, {(1 << n) - 1}")
    a("s_mov_b32 exec_hi, 0")
    a(f"buffer_store_dword v16, v17, {q4(SRD_WS)}, {base_expr_sgpr} offen sc1")
    a("s_mov_b64 exec, -1")


def b2_address(a, vt=4, s_col="s68"):
    srd(a, SRD_A, P_B2, D * 2)
    a(f"v_lshrrev_b32 v{vt}, 4, v0                 ; g")
    a(f"s_mul_i32 {s_col}, s{S_DG}, 160")
    a(f"v_lshlrev_b32 v{vt + 1}, 4, v{vt}")
    a(f"v_lshlrev_b32 v{vt + 2}, 3, v{vt}")


def b2_load_list(vt=4, s_col="s68"):
    return [f"buffer_load_dwordx4 {ar(A_B2, 4)}, v{vt + 1}, {q4(SRD_A)}, {s_col} offen",
            f"buffer_load_dwordx4 {ar(A_B2 + 4, 4)}, v{vt + 1}, {q4(SRD_A)}, {s_col} offen offset:64",
            f"buffer_load_dwordx2 {ar(A_B2 + 8, 2)}, v{vt + 2}, {q4(SRD_A)}, {s_col} offen offset:128"]


def b2_loads(a, vm):
    for x in b2_load_list():
        a(x)
    vm.add("b2", 3)


V_J, V_G4, V_ST = 20, 4, 22


def row_addresses():
    return [
        f"v_and_b32 v{V_J}, 15, v0",
        "v_lshrrev_b32 v21, 4, v0",
        [f"s_lshl_b32 s69, s{S_RBK}, 6", "s_lshl_b32 s70, s3, 4", "s_add_u32 s70, s70, s69"],
        f"v_add_u32 v{V_ST}, s70, v{V_J}                 ; row",
        f"v_mul_u32_u24 v{V_XO}, 1280, v{V_ST}",
        f"v_lshl_add_u32 v{V_XO + 1}, v21, 3, v{V_XO}",
        f"v_lshl_add_u32 v{V_XO}, v21, 4, v{V_XO}",
        f"v_lshlrev_b32 v{V_ST}, 3, v{V_ST}",
    ]


def x_loads():
    return [
        f"buffer_load_dwordx4 {vr(XR, 4)}, v{V_XO}, {q4(SRD_Q)}, s68 offen",
        f"buffer_load_dwordx4 {vr(XR + 4, 4)}, v{V_XO}, {q4(SRD_Q)}, s68 offen offset:64",
        f"buffer_load_dwordx2 {vr(XR + 8, 2)}, v{V_XO + 1}, {q4(SRD_Q)}, s68 offen offset:128",
    ]


def x_early(vt):
    return [([f"s_lshl_b32 s79, s{S_RBK}, 6", "s_lshl_b32 s80, s3, 4", "s_add_u32 s79, s79, s80",
              f"v_and_b32 v{vt}, 15, v0", f"v_add_u32 v{vt}, s79, v{vt}"], "-", 0),
            ([f"v_mul_u32_u24 v{vt}, 1280, v{vt}", f"s_mul_i32 s80, s{S_DG}, 160", f"v_add_u32 v{vt}, s80, v{vt}"], "-", 0),
            (f"v_lshrrev_b32 v{vt + 1}, 4, v0", "-", 0),
            (f"v_lshl_add_u32 v{vt + 2}, v{vt + 1}, 4, v{vt}", "-", 0),
            (f"v_lshl_add_u32 v{vt + 3}, v{vt + 1}, 3, v{vt}", "-", 0),
            (f"buffer_load_dwordx4 {vr(XR, 4)}, v{vt + 2}, {q4(SRD_Q)}, 0 offen", "x", 1),
            (f"buffer_load_dwordx4 {vr(XR + 4, 4)}, v{vt + 2}, {q4(SRD_Q)}, 0 offen offset:64", "x", 1),
            (f"buffer_load_dwordx2 {vr(XR + 8, 2)}, v{vt + 3}, {q4(SRD_Q)}, 0 offen offset:128", "x", 1)]


def stat_load():
    return [f"s_mov_b32 s71, {WS_STATS}", f"buffer_load_dwordx2 {vr(STAT2, 2)}, v{V_ST}, {q4(SRD_WS)}, s71 offen sc1"]


V_YL, V_YW = 13, 10
S_YO = 65


def y_addresses():
    return [
        f"s_mul_i32 s{S_YO}, s{S_DG}, 327680",
        f"s_lshl_b32 s{S_YO + 1}, s{S_RBK}, 7",
        f"s_add_u32 s{S_YO}, s{S_YO}, s{S_YO + 1}",
        f"s_add_u32 s{S_YO}, s{S_YO}, {WS_YT}",
        f"s_add_u32 s{S_YO + 1}, s{S_YO}, 0x20000",
        f"s_add_u32 s{S_YO + 2}, s{S_YO}, 0x40000",
        ["s_cmp_ge_u32 s3, 2",
         f"s_cselect_b32 s{S_YO + 2}, {NB_WS}, s{S_YO + 2}"],
        ["s_lshl_b32 s79, s3, 3",
         f"v_lshrrev_b32 v{V_YW}, 3, v0",
         f"v_add_u32 v{V_YW}, s79, v{V_YW}              ; row"],
        f"v_and_b32 v{V_YW + 1}, 7, v0",
        f"v_lshlrev_b32 v{V_YL}, 12, v{V_YW}",
        f"v_lshl_add_u32 v{V_YL}, v{V_YW + 1}, 4, v{V_YL}",
        f"v_and_b32 v{V_YW + 2}, 2, v{V_YW}",
        f"v_xor_b32 v{V_YW + 1}, v{V_YW + 1}, v{V_YW + 2}",
        f"v_lshrrev_b32 v{V_YW + 2}, 1, v{V_YW}",
        f"v_and_b32 v{V_YW + 2}, 4, v{V_YW + 2}",
        f"v_xor_b32 v{V_YW + 1}, v{V_YW + 1}, v{V_YW + 2}",
        f"v_lshlrev_b32 v{V_YW}, 7, v{V_YW}",
        f"v_lshl_add_u32 v{V_YW}, v{V_YW + 1}, 4, v{V_YW}",
        f"v_add_u32 v{V_YW}, {LDS_Y}, v{V_YW}",
    ]


def y_loads(a, vm):
    for p in range(3):
        a(f"buffer_load_dwordx4 {vr(YR + 4 * p, 4)}, v{V_YL}, {q4(SRD_WS)}, s{S_YO + p} offen sc1")
    vm.add("yl", 3)


XF = [32 + 2 * i for i in range(10)]
XN = [52 + 2 * i for i in range(6)] + [XR + 2 * i for i in range(4)]
B2F = 196


LAST = 3
B13_GAP = 4
LW_LEAD, LW_GAP = 3, 3
AR_GAPS = 36
YW_GAP = 54


def check_mfma_reads(ms, gaps, need=8):
    import re
    flat = []
    for m, g in zip(ms, gaps):
        flat.append(m)
        for x in g:
            flat += x if isinstance(x, list) else [x]
    done = {}
    for n, x in enumerate(flat):
        if x.startswith("v_mfma"):
            done[x.split()[1].rstrip(",")] = n
        elif x.startswith("ds_write"):
            src = x.split()[2].rstrip(",")
            if src in done:
                assert n - done[src] > need, (x, n - done[src])
    for n, x in enumerate(flat):
        if x.startswith("ds_write"):
            src = x.split()[2].rstrip(",")
            assert not any(y.startswith("v_mfma") and y.split()[1].rstrip(",") == src for y in flat[n:]), x


def spread(gaps, items, lo, hi):
    n = len(items)
    for k, x in enumerate(items):
        gaps[lo + (k * (hi - lo)) // max(n, 1)].append(x)


W2T_LANES = 64


def w2f_touch(a, vm, vt):
    n, i, c, r = vt, vt + 1, vt + 2, vt + 3
    a(f"s_and_b32 s78, s{S_LOC}, 7")
    a("s_lshl_b32 s78, s78, 2")
    a("s_add_u32 s78, s78, s3")
    a(f"v_lshl_add_u32 v{n}, v0, 5, s78")
    a(f"v_mul_u32_u24 v{i}, 6554, v{n}")
    a(f"v_lshrrev_b32 v{i}, 20, v{i}                ; step")
    a(f"v_mul_u32_u24 v{r}, 160, v{i}")
    a(f"v_sub_u32 v{r}, v{n}, v{r}")
    a(f"v_mul_u32_u24 v{c}, 1639, v{r}")
    a(f"v_lshrrev_b32 v{c}, 16, v{c}")
    a(f"v_mul_u32_u24 v{n}, 40, v{c}")
    a(f"v_sub_u32 v{r}, v{r}, v{n}                 ; line")
    a(f"v_mad_u32_u24 v{i}, v{c}, 14, v{i}")
    a(f"v_max_u32 v{c}, 1, v{c}")
    a(f"v_sub_u32 v{i}, v{i}, v{c}")
    a(f"v_add_u32 v{i}, 1, v{i}                    ; K step")
    a(f"v_mul_u32_u24 v{i}, 5120, v{i}")
    a(f"v_lshl_add_u32 v{i}, v{r}, 7, v{i}")
    a(f"s_mul_i32 s78, s{S_DG}, {54 * 5120}")
    a(f"s_add_u32 s78, s78, {WS_W2F}")
    a(f"v_mov_b32 v{c}, {NB_WS}")
    a(f"v_cmp_gt_u32 vcc, {W2T_LANES}, v0")
    a("s_nop 1")
    a(f"v_cndmask_b32 v{i}, v{c}, v{i}, vcc")
    a(f"buffer_load_dword v{n}, v{i}, {q4(SRD_WS)}, s78 offen sc1")
    vm.add("w2t", 1)


def coop_touch(a, vm):
    a(f"s_and_b32 s79, s{S_DG}, 3")
    a(f"s_lshl_b32 s80, s{S_RBK}, 2")
    a("s_add_u32 s79, s79, s80")
    a("s_mul_i32 s79, s79, 54")
    a(f"s_and_b32 s80, s{S_XCD}, 1")
    a("s_cmp_eq_u32 s80, 0")
    a("s_cselect_b32 s82, 28, 0")
    a("s_cselect_b32 s83, 13, 14")
    a("s_add_u32 s79, s79, s82")
    a("s_lshr_b32 s82, s3, 1")
    a("s_mul_i32 s82, s82, s83")
    a("s_add_u32 s79, s79, s82")
    a("s_and_b32 s82, s3, 1")
    a("s_add_u32 s79, s79, s82")
    a("s_lshl_b32 s79, s79, 10")
    a(f"s_add_u32 s79, s79, {WS_HF}")
    a("s_sub_u32 s83, s83, s82")
    a("s_sub_u32 s83, s83, 1")
    a("s_lshr_b32 s83, s83, 1")
    a("v_lshrrev_b32 v31, 3, v0")
    a("v_min_u32 v31, s83, v31")
    a("v_lshlrev_b32 v31, 11, v31")
    a("v_and_b32 v30, 7, v0")
    a("v_lshl_add_u32 v31, v30, 7, v31")
    a(f"buffer_load_dword v30, v31, {q4(SRD_WS)}, s79 offen sc1")
    vm.add("coop", 1)


def gen_gemm2(a, vm, rest=()):
    r = Asm()
    r(f"s_lshr_b32 s72, s{S_YCH}, 1")
    r(f"s_lshl_b32 s72, s72, {FS}")
    r(f"s_add_u32 s72, s72, {WS_FYT}")
    r("s_cmp_eq_u32 s3, 0")
    r(f"s_cselect_b32 s72, s72, {NB_WS}")
    r(f"s_mul_i32 s59, s{S_DG}, {40 << FS}")
    r(f"s_add_u32 s59, s59, {WS_FYT}")
    r("v_min_u32 v18, 39, v0")
    r(f"v_lshlrev_b32 v18, {FS}, v18")
    assert PF < NB
    if "b2late" not in OPT:
        for k in range(10):
            r(f"v_accvgpr_read_b32 v{ACC2 + 2 * k + 1}, a{A_B2 + k}")
        for k in range(10):
            r(f"v_lshlrev_b32 v{ACC2 + 2 * k}, 16, v{ACC2 + 2 * k + 1}")
            r(f"v_and_b32 v{ACC2 + 2 * k + 1}, 0xffff0000, v{ACC2 + 2 * k + 1}")
    interleave(a, vm, list(rest), r.lines)
    RW = [7, 8, 9]
    LB = NSTEP - LAST
    red = []
    for tau in range(1, 4):
        red += [f"s_add_u32 s69, s3, {tau}", "s_and_b32 s69, s69, 3", "s_mul_i32 s69, s69, 15360",
                f"s_add_u32 s69, s69, {LDS_RED + (tau - 1) * 5120}", f"v_add_u32 v{RW[tau - 1]}, s69, v{V_L16}"]
    V_RR, V_Y1, V_Y2, V_EP = 26, 27, 23, 16
    NL2E = -1.4426950408889634
    prep = [
        [f"s_lshl_b32 s76, s3, {FS + 6}", f"s_add_u32 s76, s76, {WS_FUT}"],
        ["s_cmp_eq_u32 s2, 0", f"s_cselect_b32 s76, s76, {NB_WS}"],
        f"v_lshlrev_b32 v{V_EP}, {FS}, v0",
        (f"buffer_load_dword v24, v{V_EP}, {q4(SRD_WS)}, s76 offen sc1", "ep"),
        ["s_mul_i32 s79, s3, 15360", f"v_add_u32 v{V_RR}, s79, v{V_L16}"],
        "v_bfe_u32 v17, v0, 2, 2                 ; r",
        "v_and_b32 v18, 3, v0                    ; c",
        "v_lshrrev_b32 v19, 1, v18",
        ["s_lshl_b32 s78, s3, 1", "v_or_b32 v19, s78, v19                  ; chunk = 2w + (c >> 1)"],
        "v_and_b32 v18, 1, v18",
        "v_lshlrev_b32 v18, 3, v18",
        f"v_add_u32 v18, {LDS_Y}, v18",
        f"v_and_b32 v{V_Y1}, 2, v17",
        f"v_and_b32 v20, 1, v{V_G4}",
        f"v_lshl_or_b32 v{V_Y1}, v20, 2, v{V_Y1}",
        f"v_xor_b32 v{V_Y1}, v{V_Y1}, v19",
        f"v_lshl_add_u32 v{V_Y1}, v{V_Y1}, 4, v18",
        f"v_lshl_add_u32 v20, v{V_G4}, 3, v17          ; 8g + r",
        f"v_lshl_add_u32 v{V_Y1}, v20, 7, v{V_Y1}",
        f"v_lshl_add_u32 v20, v{V_G4}, 2, v17          ; 4g + r",
        f"v_and_b32 v{V_Y2}, 2, v20",
        "v_lshrrev_b32 v21, 1, v20",
        "v_and_b32 v21, 4, v21",
        f"v_or_b32 v{V_Y2}, v{V_Y2}, v21",
        f"v_xor_b32 v{V_Y2}, v{V_Y2}, v19",
        f"v_lshl_add_u32 v{V_Y2}, v{V_Y2}, 4, v18",
        f"v_lshl_add_u32 v{V_Y2}, v20, 7, v{V_Y2}",
        [f"s_mov_b32 s74, {f32(NL2E)}", f"s_mov_b32 s75, {f32(NL2E)}"],
        "v_mov_b32 v30, 1.0",
        "v_mov_b32 v31, 1.0",
    ]
    assert FY_STEP <= LB - 1
    unpack = []
    for k in range(10):
        unpack.append(f"v_lshlrev_b32 v{XF[k]}, 16, v{XR + k}")
        unpack.append(f"v_and_b32 v{XF[k] + 1}, 0xffff0000, v{XR + k}")
    unpack.append(f"v_mul_f32 v{STAT2}, v{STAT2}, v{STAT2 + 1}")
    unpack.append(f"v_sub_f32 v{STAT2}, 0, v{STAT2}")
    norm = [f"v_fma_f32 v{XN[k] + h}, v{XF[k] + h}, v{STAT2 + 1}, v{STAT2}" for k in range(10) for h in range(2)]
    for i in range(LB + 1):
        last = i == LB
        need = vm.after(f"b{i}")
        if f"a{i}" in vm.ops:
            need = min(need, vm.after(f"a{i}"))
        if i == FLAG_STEP:
            need = min(need, vm.after("yt"))
        inl = "fyhead" not in OPT
        if i == FY_STEP and "nofy" not in OPT and not inl:
            need = min(need, vm.after("fy_poll"))
        if last:
            need = min([vm.after(f"b{k}") for k in range(i, NSTEP - (LAST == 3))] + [vm.after(f"a{k}") for k in range(i, NSTEP)])
        Prof.stamp(a, f"g2_w{i}")
        a(f"s_waitcnt vmcnt({min(need, 63)})")
        Prof.stamp(a, f"g2_s{i}")
        if i == FLAG_STEP:
            a("s_barrier")
            wave_flag(a, "s72")
            vm.add("fy_pub", 1)
        head = []
        if i == FY_STEP:
            r = Asm()
            if "nofy" not in OPT:
                poll(r if inl else a, 20, 18, "s59", 1, "FY", first_issued=True,
                     staged=[(5 + k, vm.after(f"fy_x{st}")) for k, st in enumerate(FY_EXTRA)])
            if inl:
                chk = [x.strip() if not x.endswith(":") else x for x in r.lines]
                head.append([f"s_waitcnt vmcnt({min(vm.after('fy_poll'), 63)})"] + chk[:1])
                head.append(chk[1:])
                r = Asm()
            y_loads(r if inl else a, vm)
            if inl:
                head += [x.strip() for x in r.lines]
        split = LAST == 3 and i + PF == NSTEP - 1
        order = TAU_ORDER if split else (0, 1, 2, 3)
        nxt = b_loads(i + PF, order) if i + PF < NSTEP else []
        seq = last_order(i) if last else [(i, T, tau) for T in range(5) for tau in range(4)]
        ms = [mfma2(*x) for x in seq]
        gaps = [[] for _ in ms]
        for n, g in enumerate(head):
            gaps[n].append(g)
        assert not (head and nxt)
        for n, g in enumerate(nxt):
            gaps[1 + (B13_GAP if split else 4) * n].append(g)
            vm.add(f"b{i + PF}_{order[n]}" if split else f"b{i + PF}", 1)
        if i == 2:
            gaps[2].append(f"v_lshrrev_b32 v{V_G4}, 4, v0")
        if i == FY_STEP - FY_LEAD and "nofy" not in OPT:
            gaps[18].append(f"buffer_load_dword v20, v18, {q4(SRD_WS)}, s59 offen sc1")
            vm.add("fy_poll", 1)
        if i in FY_EXTRA:
            gaps[FY_XGAP].append(f"buffer_load_dword v{5 + FY_EXTRA.index(i)}, v18, {q4(SRD_WS)}, s59 offen sc1")
            vm.add(f"fy_x{i}", 1)
        if i == 5:
            spread(gaps, y_addresses(), 0, 20)
        if i == 9:
            spread(gaps, [srd_text(SRD_C, P_OUT, NB_SD)], 2, 3)
        if i == 6:
            spread(gaps, red, 2, 20)
        if i == LB - 1:
            items = []
            for x in prep:
                if isinstance(x, tuple):
                    vm.add(x[1], 1)
                    x = x[0]
                items.append(x)
            spread(gaps, items + (unpack if LAST == 2 else []), len(head), 20)
        if last:
            if LAST == 2:
                spread(gaps, norm, 0, 14)
                writes = []
                for tau in range(1, 4):
                    for T in range(5):
                        pos = 10 * (tau - 1) + 5 + T + 8
                        w = f"ds_write_b128 v{RW[tau - 1]}, {vr(ACC2 + (tau * 5 + T) * 4, 4)} offset:{T * 1024}"
                        gaps[min(pos + T, 39)].append(w)
                ywait = 24
                ypos = [25, 27, 29]
            else:
                seen = set()
                for n, (k, T, tau) in enumerate(seq):
                    if k == NSTEP - 1 and tau not in seen:
                        seen.add(tau)
                        w = f"s_waitcnt vmcnt({min(vm.after(f'b{k}_{tau}'), 63)})" if "nob13w" not in OPT else "s_nop 0"
                        if n:
                            gaps[n - 1].append(w)
                        else:
                            a(w)
                fin = {(T, tau): n for n, (k, T, tau) in enumerate(seq) if k == NSTEP - 1}
                lead = {x: LW_LEAD for x in fin}
                base = [list(g) for g in gaps]
                while True:
                    gaps = [list(g) for g in base]
                    pos = -1
                    wr = {}
                    for (T, tau), n in sorted(fin.items(), key=lambda x: x[1]):
                        if tau and "nolw" not in OPT:
                            pos = min(max(n + lead[T, tau], pos + LW_GAP), len(ms) - 1)
                            wr[T, tau] = pos
                    free = [n for n in range(len(ms)) if n not in wr.values() and n < YW_GAP]
                    arith = unpack + norm
                    for k, x in enumerate(arith):
                        gaps[free[(k * min(len(free), AR_GAPS)) // len(arith)]].append(x)
                    short = [x for x, pos in wr.items()
                             if pos - fin[x] + sum(len(y) if isinstance(y, list) else 1 for g in gaps[fin[x]:pos] for y in g) < 8]
                    if not short:
                        break
                    for x in short:
                        lead[x] = wr[x] - fin[x] + 1
                for (T, tau), pos in wr.items():
                    gaps[pos].insert(0, f"ds_write_b128 v{RW[tau - 1]}, {vr(ACC2 + (tau * 5 + T) * 4, 4)} offset:{T * 1024}")
                ywait = min(YW_GAP, len(ms) - 1)
                ypos = [min(ywait + d, len(ms) - 1) for d in (0, 2, 4)]
            if "noyw" not in OPT:
                gaps[ywait].append(f"s_waitcnt vmcnt({min(vm.after('yl'), 63)})")
            for p in range(3 if "noyw" not in OPT else 0):
                gaps[ypos[p]].append(f"ds_write_b128 v{V_YW}, {vr(YR + 4 * p, 4)} offset:{p * 4096}")
            check_mfma_reads(ms, gaps)
        weave(a, ms, gaps)
    for k in range(10 if "b2late" in OPT else 0):
        a(f"v_accvgpr_read_b32 v{B2F + 2 * k + 1}, a{A_B2 + k}")
    for k in range(10 if "b2late" in OPT else 0):
        a(f"v_lshlrev_b32 v{B2F + 2 * k}, 16, v{B2F + 2 * k + 1}")
        a(f"v_and_b32 v{B2F + 2 * k + 1}, 0xffff0000, v{B2F + 2 * k + 1}")

    Prof.stamp(a, "g2_main")
    a("s_waitcnt lgkmcnt(0)")
    a("s_barrier")

    PS, YB = 124, 220
    yfirst = "ylate" not in OPT

    def y_reads():
        for T in range(4):
            off = ((T & 1) * 4 + (T >> 1) * 32) * 128
            a(f"ds_read_b64_tr_b16 {vr(YB + 2 * T, 2)}, v{V_Y1} offset:{off}")
        a(f"ds_read_b64_tr_b16 {vr(YB + 8, 2)}, v{V_Y2} offset:{64 * 128}")

    YFP = [92 + 2 * i for i in range(6)] + [230 + 2 * i for i in range(4)]

    def y_gate():
        for i in range(10):
            a(f"v_lshlrev_b32 v{YFP[i]}, 16, v{YB + i}")
            a(f"v_and_b32 v{YFP[i] + 1}, 0xffff0000, v{YB + i}")
        for i in range(10):
            a(f"v_pk_mul_f32 {vr(XN[i], 2)}, {vr(XN[i], 2)}, {vr(YFP[i], 2)}")

    if yfirst:
        y_reads()
    for T in range(5):
        for n in range(3):
            a(f"ds_read_b128 {vr(PS + 20 * n + 4 * T, 4)}, v{V_RR} offset:{LDS_RED + n * 5120 + T * 1024}")
    if yfirst:
        a("s_waitcnt lgkmcnt(14)")
        y_gate()
    else:
        y_reads()
    for i in range(10 if "b2late" in OPT else 0):
        a(f"v_pk_add_f32 {vr(ACC2 + 2 * i, 2)}, {vr(ACC2 + 2 * i, 2)}, {vr(B2F + 2 * i, 2)}")
    E = 72
    for T in range(5):
        a(f"s_waitcnt lgkmcnt({3 * (4 - T) if yfirst else min(14, 3 * (4 - T) + 5)})")
        for n in range(3):
            for h in range(2):
                i = 2 * T + h
                a(f"v_pk_add_f32 {vr(ACC2 + 2 * i, 2)}, {vr(ACC2 + 2 * i, 2)}, {vr(PS + 20 * n + 2 * i, 2)}")
        for h in range(2):
            i = 2 * T + h
            a(f"v_pk_mul_f32 {vr(E + 2 * i, 2)}, {vr(ACC2 + 2 * i, 2)}, s[74:75]")
        for k in range(4):
            a(f"v_exp_f32 v{E + 4 * T + k}, v{E + 4 * T + k}")
    if not yfirst:
        a("s_waitcnt lgkmcnt(0)")
        y_gate()
    for i in range(10):
        a(f"v_pk_add_f32 {vr(E + 2 * i, 2)}, {vr(E + 2 * i, 2)}, v[30:31]")
    for i in range(20):
        a(f"v_rcp_f32 v{E + i}, v{E + i}")
    OB = 32
    for grp in ((0, 1, 2, 3), (4, 5, 6, 7), (8, 9)):
        for i in grp:
            a(f"v_pk_mul_f32 {vr(E + 2 * i, 2)}, {vr(E + 2 * i, 2)}, {vr(ACC2 + 2 * i, 2)}")
        for i in grp:
            a(f"v_pk_fma_f32 {vr(E + 2 * i, 2)}, {vr(E + 2 * i, 2)}, {vr(XN[i], 2)}, {vr(XF[i], 2)}")
        for i in grp:
            a(f"v_cvt_pk_bf16_f32 v{OB + i}, v{E + 2 * i}, v{E + 2 * i + 1}")
        pol = " sc1" if "out_sc1" in OPT else " nt" if "out_nt" in OPT else ""
        if grp[0] < 8:
            a(f"buffer_store_dwordx4 {vr(OB + grp[0], 4)}, v{V_XO}, {q4(SRD_C)}, s68 offen offset:{16 * grp[0]}{pol}")
        else:
            a(f"buffer_store_dwordx2 {vr(OB + 8, 2)}, v{V_XO + 1}, {q4(SRD_C)}, s68 offen offset:128{pol}")


def srd_text(dst, ptr, size):
    return [f"s_mov_b32 s{dst}, s{ptr}", f"s_mov_b32 s{dst + 1}, s{ptr + 1}", f"s_mov_b32 s{dst + 2}, {size}", f"s_mov_b32 s{dst + 3}, 0x20000"]
```

```python
import struct
import sys
from asmlib import *
from common import *

SRD_Q, SRD_WS, SRD_A, SRD_B, SRD_C, SRD_D = 32, 36, 40, 44, 48, 52
S_TAG, S_XCD, S_LOC = 56, 57, 58

WS_EPOCH = 0
FS = int(([x[9:] for x in sys.argv if x.startswith('--flagsh=')] or ['6'])[0])
WS_FUT = 0x20000
WS_FW = 0x28000
WS_FST = 0x30000
WS_FHF = 0x38000
WS_FYT = 0x40000
NB_WS = WS_HF + NB_HF
TAG_STEP = 0x9E3779B9
OPT = set()

LDS_RING = 0
LDS_CS = 131072
LDS_UT = 131584
LDS_A4 = LDS_UT + 8192
LDS_BYTES = LDS_UT + 3 * 8192
LDS_A4I = 112 * 1024


NT_DEFAULT = {"nt_kv"}


def nt(name):
    return " nt" if (name in OPT) != (name in NT_DEFAULT) else ""


def f32(x):
    return "0x%08x" % struct.unpack("<I", struct.pack("<f", x))[0]


def q4(r):
    return f"s[{r}:{r + 3}]"


class VM:
    def __init__(self):
        self.ops = []

    def add(self, tag, n=1):
        self.ops += [tag] * n

    def after(self, tag):
        idx = max(i for i, t in enumerate(self.ops) if t == tag)
        return len(self.ops) - 1 - idx

    def wait(self, a, tag, extra=""):
        n = min(self.after(tag), 63)
        a(f"s_waitcnt vmcnt({n}){extra}")


def emit(a, g):
    for x in (g if isinstance(g, list) else [g]):
        a(x)


def scc_groups(lines):
    groups = []
    masked = False
    for ln in lines:
        if not ln.strip():
            continue
        op = ln.strip().split()[0]
        if masked:
            groups[-1].append(ln)
            masked = not ln.strip().startswith("s_mov_b64 exec, -1")
        elif ln.strip().startswith("s_mov_b32 exec_lo"):
            groups.append([ln])
            masked = True
        elif op.startswith(("s_cselect", "s_addc", "s_subb")):
            merged = [ln]
            while True:
                g = groups.pop()
                merged = g + merged
                if any(x.strip().startswith(("s_cmp", "s_add_u32", "s_sub_u32")) for x in g):
                    break
            groups.append(merged)
        else:
            groups.append([ln])
    return groups


def interleave(a, vm, pieces, lines, frac=1.0):
    groups = scc_groups(lines)
    marks = [i for i, p in enumerate(pieces) if isinstance(p, tuple)]
    n = len(marks)
    span = int(len(groups) * frac)
    gi = 0

    def put(g):
        for x in g:
            w = x.split()
            if w[0] == "WAIT":
                a(f"s_waitcnt vmcnt({min(vm.after(w[1]) + int(w[2]), 63)})")
            else:
                a(x)

    k = 0
    for p in pieces:
        if isinstance(p, tuple):
            emit(a, p[0])
            vm.add(p[1], p[2])
            k += 1
            while gi < (k * span) // n and gi < len(groups):
                put(groups[gi])
                gi += 1
        else:
            emit(a, p)
    while gi < len(groups):
        put(groups[gi])
        gi += 1


def visit_pages(a, role, mark=True):
    if "novisit" in OPT:
        return
    if mark:
        a(f"s_mov_b32 s{SRD_A + 2}, {int(role == 'I')}")
    a("s_mov_b64 exec, 0")
    for w in range(3):
        a(f"s_cmp_eq_u32 s3, {w}")
        a(f"s_cbranch_scc1 PAGE{2 * w + 1}")
    a("s_branch PAGE7")
    if role == "N":
        a.label("VISIT_RET")
        a(f"s_cmp_eq_u32 s{SRD_A + 2}, 1")
        a("s_cbranch_scc1 VISIT_RET_I")
    else:
        a.label("VISIT_RET_I")
    a("s_mov_b64 exec, -1")


def code_touch(first, last, vt, vdst):
    if "noct" in OPT:
        return []
    here = Asm().uid("CT")
    q = f"(({last}-{first}+511)/512)"
    return [([f"v_min_u32 v{vt}, {q}-1, v0",
              f"s_mul_i32 s80, s3, {q}",
              f"v_add_u32 v{vt}, s80, v{vt}",
              f"v_lshlrev_b32 v{vt}, 7, v{vt}",
              "s_getpc_b64 s[80:81]",
              f"{here}:",
              f"v_add_u32 v{vt}, {first}-{here}, v{vt}",
              f"s_mov_b32 s82, CODE_END-{here}",
              "s_mov_b32 s83, 0x20000",
              f"buffer_load_dword v{vdst}, v{vt}, s[80:83], 0 offen"], "ct", 1)]


def weave(a, main, gaps):
    n = max(len(main), len(gaps))
    for i in range(n):
        if i < len(main):
            a(main[i])
        if i < len(gaps):
            for x in gaps[i]:
                emit(a, x)


COLD = []


def flags_set(a, vflag, nregs, mask):
    for i in range(nregs):
        a(f"v_cmp_ne_u32 vcc, s{S_TAG}, v{vflag + i}")
        if i == 0:
            a("s_mov_b64 s[82:83], vcc")
        else:
            a("s_or_b64 s[82:83], s[82:83], vcc")
    if mask is not None:
        a(f"s_and_b64 s[82:83], s[82:83], s[{mask}:{mask + 1}]")
    a("s_cmp_eq_u64 s[82:83], 0")


def poll(a, vflag, vaddr, soff, nregs, label, mask=None, first_issued=False, staged=()):
    op = {1: "buffer_load_dword", 2: "buffer_load_dwordx2", 4: "buffer_load_dwordx4"}[nregs]
    slow = a.uid(label + "_RETRY")
    done = a.uid(label + "_DONE")
    if not first_issued:
        a(f"{op} {vr(vflag, nregs)}, v{vaddr}, {q4(SRD_WS)}, {soff} offen sc1")
        a("s_waitcnt vmcnt(0)")
    if "nopoll" in OPT:
        return
    flags_set(a, vflag, nregs, mask)
    a(f"s_cbranch_scc0 {slow}")
    a.label(done)
    c = Asm()
    loop = c.uid(label + "_LOOP")
    c.label(slow)
    for reg, cnt in staged:
        c(f"s_waitcnt vmcnt({min(cnt, 63)})")
        flags_set(c, reg, nregs, mask)
        c(f"s_cbranch_scc1 {done}")
    c("s_mov_b32 s81, 0x40000")
    c.label(loop)
    c(f"{op} {vr(vflag, nregs)}, v{vaddr}, {q4(SRD_WS)}, {soff} offen sc1")
    c("s_waitcnt vmcnt(0)")
    flags_set(c, vflag, nregs, mask)
    c(f"s_cbranch_scc1 {done}")
    c("s_sub_u32 s81, s81, 1")
    c("s_cmp_lg_u32 s81, 0")
    c(f"s_cbranch_scc1 {loop}")
    c(f"s_branch {done}")
    COLD.extend(c.lines)
```

```python
import sys
from fcommon import *
from layout import layout
import f_front as FR, f_gemm1 as G1, f_conv as CV, f_gemm2 as G2

NAME = "recurrent_scan__ssm_conv_h3__dense_activation_gelu__prompt"
S_FH, S_FHP, S_HM = 48, 49, 50
A_SPLIT = [0, 16, 13, 9, 10, 11, 11]
I_P2_UNIT = 6
S_TCH = 29
S_FM = 50
S_Y8 = 18
CODE_PHASE = 0x300
BPRE, FH_UNIT, FH_GAP = 0, 3, 10
XB, XM = 3, 1
B2_AT, S_B2C = (8, 1), "s60"
C4F = []
PUB_UNIT, PUB_GAP = 0, 24


def flat(lst):
    out = []
    for g in lst:
        out.append(g)
    return out


def a_fill(steps, vm=None):
    out = []
    for i in steps:
        for g in G2.a_loads(i):
            out.append((g, f"a{i}", 1))
    return out


XSP = 1
CT2_UNIT = -1
XE_AT, XE_UNIT = (9, 1), 5
P2_AT = (9, 0)
GS2_AT = (9, 1)


def gen(a):
    vm = VM()
    Prof.stamp(a, "start")
    if Prof.only and "pc" in Prof.only:
        Prof.stamp(a, "pc")
    FR.gen_entry(a, "EXIT")
    for o in OPT:
        if o.startswith("shift") and o[5:].isdigit():
            for _ in range(int(o[5:]) // 4):
                a("s_nop 0")
    a(f"s_cmp_ge_u32 s{S_LOC}, 28")
    a("s_cbranch_scc1 IDLE")

    FR.normal_front(a, vm, G1.read_bases)
    ls = {k: scc_groups(v) for k, v in FR.late_setup().items()}

    allf = a_fill(range(0, G2.NSTEP))
    n0 = A_SPLIT[0]
    n1 = n0 + A_SPLIT[1]
    n2 = n1 + A_SPLIT[2]
    nl = 2 * (FR.NT - G1.T_W2C) + 1
    late = [allf[(k * n0) // nl:((k + 1) * n0) // nl] for k in range(nl)]

    r = Asm()
    G1.poll_addresses(r)
    late_setup = scc_groups(r.lines) + ls["b1a"]
    r = Asm()
    G2.coords(r)
    r(f"s_mul_i32 s{CV.S_CH}, s{S_XCD}, 56")
    r(f"s_lshl_b32 s78, s{S_LOC}, 1")
    r(f"s_add_u32 s{CV.S_CH}, s{CV.S_CH}, s78")
    r(f"s_lshr_b32 s77, s{CV.S_CH}, 6")
    G1.p2_address(r, "s77", f"s{G2.S_DG}")
    CV.conv4_scalars(r)
    late_setup += scc_groups(r.lines)
    halves = [(t, h) for t in range(2, 8) for h in range(2)]
    b2_early = "b2join" not in OPT

    x_late = "xlate" in OPT or "gslate" in OPT

    def hook(t, h):
        out = []
        if t == 1:
            n = len(ls["flag"])
            out += ls["flag"][h * n // 2:(h + 1) * n // 2]
        if FR.KVC is not None and t == FR.KVL:
            kl = FR.kv_late_loads()
            n = 9 if t else 0
            out += kl[:n] if h == 0 else kl[n:]
        if (t, h) in halves:
            k, n = halves.index((t, h)), len(late_setup)
            out += late_setup[k * n // len(halves):(k + 1) * n // len(halves)]
        if (t, h) == (6, 0):
            out += code_touch("G1_END", "C4JOIN", 26, 26)
        if (t, h) == (8, 0):
            CV.load_d(a)
            out += FR.bias_loads()
            if "noft" not in OPT and not C4F:
                out.append("v_lshlrev_b32 v26, 7, v0")
                out.append((f"buffer_load_dword v26, v26, {q4(SRD_B)}, s{CV.S_HO} offen", "ft", 1))
        if (t, h) == (G1.T_P1, 0):
            out += ["v_and_b32 v16, 15, v0", f"v_add_u32 v16, s{FR.S_ROW0}, v16", "v_lshlrev_b32 v16, 3, v16", f"s_mov_b32 s59, {WS_STATS}"]
            for sg in range(4):
                out.append((f"buffer_load_dwordx2 {vr(G1.STAT + 2 * sg, 2)}, v16, {q4(SRD_WS)}, s59 offen offset:{sg * 128} sc1", "stats", 1))
        if "xtog" not in OPT and not x_late:
            xe = G2.x_early(116)
            if (t, h) == (8, 1):
                out += [x[0] for x in xe if not x[2]]
            if (t, h) == (9, 1):
                ga = G1.gelu_addresses()
                ct = code_touch("C4JOIN", "G2_START", 19, 19) if "ctset" not in OPT else []
                xl = [x for x in xe if x[2]]
                n = XSP
                out += [xl[0]] + ga[:4] + ([xl[1]] if n > 1 else []) + ga[4:] + ct
                late[-1].extend(xl[n:])
        else:
            if not x_late and (t, h) == XE_AT:
                out += [x if x[2] else x[0] for x in G2.x_early(104)]
            if "ctset" not in OPT and (t, h) == (9, 1):
                out += code_touch("C4JOIN", "G2_START", 19, 19)
            if "gslate" not in OPT and (t, h) == GS2_AT:
                out += G1.gelu_addresses()
        if (t, h) == P2_AT:
            out = [(f"buffer_load_dword v{G1.V_P2}, v{G1.V_P2A}, {q4(SRD_WS)}, 0 offen sc1", "p2", 1)] + out
        if (t, h) == B2_AT and b2_early:
            r = Asm()
            G2.b2_address(r, 104, S_B2C)
            out += scc_groups(r.lines) + [(x, "b2", 1) for x in G2.b2_load_list(104, S_B2C)]
        if (t, h) in C4F:
            k = C4F.index((t, h))
            fl = CV.conv4_loads(G2.V_L16, fam="nt_f4")[:6]
            out += [(x, "c4f", 1) for x in fl[k * 6 // len(C4F):(k + 1) * 6 // len(C4F)]]
        if t >= G1.T_W2C:
            out += late[2 * (t - G1.T_W2C) + h]
        return out

    def after_w2chk(r):
        if "w2t" in OPT:
            G2.w2f_touch(r, vm, 232)

    G1.gen_gemm1_main(a, vm, hook, late[-1], after_w2chk, w2chk=(n0 > 0 or "w2t" in OPT) and "nop2w" not in OPT)
    a.label("G1_END")
    Prof.stamp(a, "g1_main")
    c4 = [(x if "noc4" not in OPT else "s_nop 0", "c4in", 1) for x in CV.conv4_loads(G2.V_L16, fam="nt_kv" if "ntc4" not in OPT else "nt_f4")[6 if C4F else 0:]]
    if "ctset" in OPT:
        c4 += code_touch("C4JOIN", "G2_START", 19, 19)

    def after_p2(a):
        pass

    def join_setup(r):
        r(f"s_lshr_b32 s{S_FHP}, s{G2.S_RBK}, 1")
        r(f"s_lshl_b32 s{S_FHP}, s{S_FHP}, {FS + 4}")
        r(f"s_add_u32 s{S_FHP}, s{S_FHP}, {WS_FHF}")
        G2.b_offsets(r)
        if not b2_early:
            G2.b2_address(r)
        else:
            r(f"s_mul_i32 s68, s{G2.S_DG}, 160")

    r = Asm()
    r(f"s_lshl_b32 s{S_FH}, s{FR.S_RB}, 4")
    r(f"s_add_u32 s{S_FH}, s{S_FH}, s{FR.S_CG}")
    r(f"s_lshl_b32 s{S_FH}, s{S_FH}, {FS}")
    r(f"s_add_u32 s{S_FH}, s{S_FH}, {WS_FHF}")
    r("s_cmp_eq_u32 s3, 0")
    r(f"s_cselect_b32 s{S_FH}, s{S_FH}, {NB_WS}")
    r(f"s_mov_b32 s{S_FM}, 1")
    r(f"s_lshr_b32 s78, s{FR.S_FT0}, 1")
    r("s_lshl_b32 s78, s78, 10")
    r(f"s_add_u32 s{S_TCH}, s76, s78")
    woven = "joinw" in OPT
    if woven:
        join_setup(r)
    G1.gen_gelu(a, vm, after_p2, c4, allf[n0:n1], scc_groups(r.lines) if woven else ())
    Prof.stamp(a, "gelu")
    if not woven:
        for x in r.lines:
            a(x)

    a.label("C4JOIN")
    if not woven:
        join_setup(a)
    if not b2_early:
        G2.b2_loads(a, vm)
    a("v_min_u32 v18, 13, v0")
    a(f"v_lshlrev_b32 v18, {FS}, v18               ; h flag poll address")

    def publish_at_barrier(r, after):
        if not after:
            r(f"s_waitcnt vmcnt({min(vm.after('hf'), 63)}) lgkmcnt(0)")
            return
        r(f"v_mov_b32 v16, s{S_TAG}")
        r(f"v_lshlrev_b32 v17, {FS}, v0")
        r(f"s_mov_b32 exec_lo, s{S_FM}")
        r("s_mov_b32 exec_hi, 0")
        r(f"buffer_store_dword v16, v17, {q4(SRD_WS)}, s{S_FH} offen sc1")
        r("s_mov_b64 exec, -1")
        vm.add("fh_pub", 1)

    def publish_stores(r):
        r(f"s_waitcnt vmcnt({min(vm.after('hf'), 63)})")
        Prof.stamp(r, "hf_ack")
        if "touch" in OPT:
            r("v_lshrrev_b32 v31, 4, v0")
            r("v_mul_u32_u24 v31, 55296, v31")
            r("v_and_b32 v30, 15, v0")
            r("v_lshl_add_u32 v31, v30, 7, v31")
            r(f"buffer_load_dword v30, v31, {q4(SRD_WS)}, s{S_TCH} offen sc1")
            vm.add("touch", 1)
        r("s_barrier")
        r(f"v_mov_b32 v16, s{S_TAG}")
        r(f"v_lshlrev_b32 v17, {FS}, v0")
        r(f"s_mov_b32 exec_lo, s{S_FM}")
        r("s_mov_b32 exec_hi, 0")
        r(f"buffer_store_dword v16, v17, {q4(SRD_WS)}, s{S_FH} offen sc1")
        r("s_mov_b64 exec, -1")
        vm.add("fh_pub", 1)

    nbp = BPRE

    def fh_check(r):
        r(f"s_waitcnt vmcnt({min(vm.after('fh_poll'), 63)})")
        poll(r, 19, 18, f"s{S_FHP}", 1, "FH", first_issued=True)
        Prof.stamp(r, "fh_ok")
        emit(r, G2.stat_load())
        vm.add("st2", 1)

    def fh_request(r):
        r(f"buffer_load_dword v19, v18, {q4(SRD_WS)}, s{S_FHP} offen sc1")
        vm.add("fh_poll", 1)

    def fill(u):
        pre, pinned = None, {}
        lo = n2 + sum(A_SPLIT[3:3 + u])
        if u == PUB_UNIT and "pubu" in OPT:
            pinned[PUB_GAP] = publish_stores
        extra = allf[lo:lo + A_SPLIT[3 + u]]
        if u == CT2_UNIT:
            extra = extra + code_touch("G2_START", "IDLE", 19, 19)
        if nbp:
            if u == FH_UNIT:
                pinned[FH_GAP] = fh_request
            if u == 3:
                pre = fh_check
                extra = [(g, f"b{i}", 1) for i in range(nbp) for g in G2.b_loads(i)] + extra
        elif "flate" not in OPT:
            if u == FH_UNIT:
                pinned[FH_GAP] = fh_request
        elif u == 3:
            pre = fh_request
        if u == 1:
            xs = [(g, "-", 0) for g in G2.row_addresses()] + ([(g, "x", 1) for g in G2.x_loads()] if x_late else [])
            extra = xs + extra if "xold" in OPT or not x_late else extra + xs
        return pre, extra, pinned

    nxb = min(max(XB, nbp), G2.PF)
    nxm = min(max(XB + XM, nbp), G2.PF)

    def setup_loads(fr):
        ct = code_touch("G2_START", "IDLE", 19, 19) if CT2_UNIT < 0 else []
        return fr + ct if "ct2last" in OPT else ct + fr

    def before_xbar():
        if not nbp:
            fh_check(a)
        return [(g, f"b{i}", 1) for i in range(nbp, nxb) for g in G2.b_loads(i)]

    def after_xbar():
        return [(g, f"b{i}", 1) for i in range(nxb, nxm) for g in G2.b_loads(i)]

    CV.gen_conv4(a, vm, fill, before_xbar, after_xbar, setup_loads(allf[n1:n2]),
                 None if "pubu" in OPT else publish_at_barrier)
    a.label("G2_START")
    Prof.stamp(a, "cv_end")
    G2.gen_gemm2(a, vm, [(g, f"b{i}", 1) for i in range(nxm, G2.PF) for g in G2.b_loads(i)])
    a("s_cmp_lg_u32 s2, 0")
    a("s_cbranch_scc1 DONE")
    a("s_waitcnt vmcnt(0)")
    poll(a, 24, 16, "s76", 1, "EP", first_issued=True)
    a("s_barrier")
    a("s_cmp_lg_u32 s3, 0")
    a("s_cbranch_scc1 DONE")
    a(f"s_sub_u32 s73, s{S_TAG}, {TAG_STEP - 1}")
    a("v_mov_b32 v29, s73")
    a("v_mov_b32 v30, 0")
    a("s_mov_b32 exec_lo, 1")
    a("s_mov_b32 exec_hi, 0")
    a(f"buffer_store_dword v29, v30, {q4(SRD_WS)}, 0 offen sc1")
    a("s_mov_b64 exec, -1")
    a("s_branch DONE")

    a.label("IDLE")
    vi = VM()

    def filter_loads(a):
        FR.idle_channel(a)
        return CV.conv8_prepare(a)

    FR.idle_front(a, vi, filter_loads, CV.conv8_filter_build, code_touch("I_LATE", "DONE", 29, 29))
    CV.load_d(a)
    G2.coords(a)
    if b2_early:
        G2.b2_address(a, 16, "s78")
        for x in G2.b2_load_list(16, "s78"):
            a(x)
        vi.add("b2", 3)
    a("s_mov_b32 s68, 7")
    G1.p2_address(a, "s68", f"s{G2.S_DG}")
    a(f"buffer_load_dword v{G1.V_P2}, v{G1.V_P2A}, {q4(SRD_WS)}, 0 offen sc1")
    vi.add("fai", 1)
    FR.idle_w2_stores(a, vi)
    a(f"s_mov_b32 s{S_HM}, -1")
    a(f"s_mov_b32 s{S_HM + 1}, 0")
    vi.wait(a, "fai")
    poll(a, G1.V_P2, G1.V_P2A, "0", 1, "FAI", mask=S_HM, first_issued=True)
    Prof.stamp(a, "i_fa")

    C4_PARK = 104

    def switch_channels(a):
        a(f"s_add_u32 s{S_Y8}, s{CV.S_CHOFF}, {WS_YT}")
        a(f"s_sub_u32 s{CV.S_CH}, s{CV.S_CH}, s3")
        a(f"s_lshl_b32 s{S_FH}, s{CV.S_CH}, {FS - 1}")
        a(f"s_add_u32 s{S_FH}, s{S_FH}, {WS_FYT}")
        a("s_cmp_eq_u32 s3, 0")
        a(f"s_cselect_b32 s{S_FH}, s{S_FH}, {NB_WS}     ; wave 0 signals the two channel pairs of the first convolution")
        a(f"s_mov_b32 s{S_FM}, 3")
        a(f"s_add_u32 s{CV.S_CH}, s{CV.S_CH}, 4")
        CV.conv4_scalars(a)
        CV.load_d(a)

    def fill8(u):
        pre, extra = None, []
        if u == 0:
            extra = [(x, "c4in", 1) for x in CV.conv4_loads(G2.V_L16, C4_PARK)]
        if u == XE_UNIT and not x_late:
            extra += G2.x_early(236)
        if u == I_P2_UNIT - 2:
            extra.insert(0, (f"buffer_load_dword v{G1.V_P2}, v{G1.V_P2A}, {q4(SRD_WS)}, 0 offen sc1", "p2", 1))
        if u == I_P2_UNIT:
            def pre(r):
                G1.own_check(r, vi, "p2", G1.V_P2, G1.V_P2A, 1, "P2I")
        if u >= I_P2_UNIT:
            n = 8 - I_P2_UNIT
            k = u - I_P2_UNIT
            extra += allf[(k * n1) // n:((k + 1) * n1) // n]
        return pre, extra, {}

    CV.gen_conv8(a, vi, fill8, lambda r: FR.idle_w2_publish(r, vi), switch_channels, f"s{S_Y8}")
    vi.wait(a, "c4in")
    for i in range(32):
        a(f"v_mov_b32 v{CV.C4_HA + i}, v{CV.C4_HA + C4_PARK + i}")
    a(f"s_mov_b32 s{S_TCH}, {NB_WS}")
    if woven:
        join_setup(a)
    a("s_barrier")
    a("s_branch C4JOIN")

    a.label("DONE")
    if "drain" in OPT:
        a("s_waitcnt vmcnt(0)")
    names = Prof.dump(a, 0, P_WS)
    a.label("EXIT")
    a("s_endpgm")
    a.lines.extend(COLD)
    a.label("CODE_END")
    return names


def build():
    a = Asm()
    Prof.reset([90, 92, 94, 96, 98, 100])
    names = gen(a)
    pads = 0 if "novisit" in OPT else 8
    lines, placed, info = layout(a.lines, CODE_PHASE, pads, align="noalign" not in OPT, mfma_too="alignm" in OPT)
    assert placed == pads, placed
    for k in range(1, pads + 1):
        lines = [x.replace(f"PAGE_NEXT{k}", f"PAGE{k + 1}" if k & 1 else "VISIT_RET") if f"PAGE_NEXT{k}" in x else x for x in lines]
    a.lines = lines
    print("layout:", info)
    n = NAME + "_kernel"
    out = f"; @launch grid=(256,1,1) block=(256,1,1) lds={LDS_BYTES}\n"
    if names:
        out += "; stamps: " + ",".join(names) + "\n"
    out += '.amdgcn_target "amdgcn-amd-amdhsa--gfx950"\n.text\n'
    out += f".globl {n}\n.p2align 12\n.type {n},@function\n{n}:\n" + a.text()
    out += f""".section .rodata,"a"
.p2align 6
.amdhsa_kernel {n}
  .amdhsa_next_free_vgpr 512
  .amdhsa_next_free_sgpr 102
  .amdhsa_accum_offset 256
  .amdhsa_group_segment_fixed_size 0
  .amdhsa_kernarg_size 112
  .amdhsa_user_sgpr_count 2
  .amdhsa_user_sgpr_kernarg_segment_ptr 1
  .amdhsa_system_sgpr_workgroup_id_x 1
.end_amdhsa_kernel
"""
    return out, names


if __name__ == "__main__":
    Prof.enabled = "--prof" in sys.argv
    Prof.only = None
    for x in sys.argv[1:]:
        if x == "--clk":
            Prof.op = "s_memtime"
        if x.startswith("--opt="):
            OPT.update(x[6:].split(","))
        if x.startswith("--amp="):
            nm, k, who = x[6:].split(",")
            Prof.enabled, Prof.only, Prof.amp = True, {nm}, (nm, int(k), int(who))
        if x.startswith("--only="):
            Prof.only = set(x[7:].split(","))
    for o in OPT:
        if o.startswith("pf") and o[2:].isdigit():
            G2.PF = int(o[2:])
        if o.startswith("fl") and o[2:].isdigit():
            G2.FY_LEAD = int(o[2:])
        if o == "lb2":
            G2.LAST = 2
        if o.startswith("lw") and o[2:].replace("_", "").isdigit():
            G2.LW_LEAD, G2.LW_GAP = [int(x) for x in o[2:].split("_")]
        if o.startswith("ar") and o[2:].isdigit():
            G2.AR_GAPS = int(o[2:])
        if o.startswith("yw") and o[2:].isdigit():
            G2.YW_GAP = int(o[2:])
        if o.startswith("bg") and o[2:].isdigit():
            G2.B13_GAP = int(o[2:])
        if o.startswith("fy") and o[2:].isdigit():
            G2.FY_STEP = int(o[2:])
        if o.startswith("as"):
            A_SPLIT = [int(x) for x in o[2:].split("_")]
            assert sum(A_SPLIT) == 70
        if o.startswith("g0") and o[2:].isdigit():
            G1.G0 = int(o[2:])
        if o.startswith("wl") and o[2:].isdigit():
            G2.W2T_LANES = int(o[2:])
        if o.startswith("fs") and o[2:].isdigit():
            G2.FLAG_STEP = int(o[2:])
        if o.startswith("tp") and o[2:].isdigit():
            G1.T_P1 = int(o[2:])
        if o.startswith("wd") and o[2:].isdigit():
            G1.T_W2D = int(o[2:])
        if o.startswith("wc") and o[2:].isdigit():
            G1.T_W2C = int(o[2:])
        if o.startswith("wq") and o[2:].isdigit():
            G1.T_W2L = int(o[2:])
        if o.startswith("ip") and o[2:].isdigit():
            I_P2_UNIT = int(o[2:])
        if o.startswith("cf") and o[2:].replace("_", "").isdigit():
            C4F = [(int(x[0]), int(x[1])) for x in o[2:].split("_")]
        if o.startswith("xb") and o[2:].isdigit():
            XB, XM = int(o[2]), int(o[3])
        if o.startswith("ba") and o[2:].isdigit():
            B2_AT = (int(o[2]), int(o[3]))
        if o.startswith("bp") and o[2:].isdigit():
            BPRE = int(o[2:])
        if o.startswith("fg") and o[2:].isdigit():
            FH_UNIT, FH_GAP = int(o[2]), int(o[3:])
        if o.startswith("kv") and len(o) == 4 and o[3].isdigit():
            FR.KVL = o[2] if o[2] in "fs" else int(o[2])
            FR.KVC = int(o[3])
        if o.startswith("cu") and o[2:].isdigit():
            CT2_UNIT = int(o[2:])
        if o.startswith("xu") and o[2:].isdigit():
            XE_UNIT = int(o[2:])
        if o.startswith("xn") and o[2:].isdigit():
            XSP = int(o[2:])
        if o.startswith("xe") and o[2:].isdigit():
            XE_AT = (int(o[2]), int(o[3]))
        if o.startswith("pa") and o[2:].isdigit():
            P2_AT = (int(o[2]), int(o[3]))
        if o.startswith("ga") and o[2:].isdigit():
            GS2_AT = (int(o[2]), int(o[3]))
        if o.startswith("fx") and o[2:].isdigit():
            G2.FY_EXTRA = [int(x) for x in o[2:]]
        if o.startswith("pg") and o[2:].isdigit():
            PUB_GAP = int(o[2:])
    args = [x for x in sys.argv[1:] if not x.startswith("--")]
    path = args[0] if args else f"/code/{NAME}.s"
    txt, names = build()
    open(path, "w").write(txt)
    print("wrote", path, len(txt), "bytes; stamps:", ",".join(names) if names else None)
```
